```python
import torch

def _softmax(x, axis=-1):
    return torch.softmax(x, dim=axis)

def _gelu(x):
    return torch.nn.functional.gelu(x, approximate='tanh')

def _silu(x):
    return torch.nn.functional.silu(x)

def _sigmoid(x):
    return torch.sigmoid(x)

def _layernorm(x, axis=-1, eps=1e-05):
    m = x.mean(dim=axis, keepdim=True)
    v = x.var(dim=axis, keepdim=True, unbiased=False)
    return (x - m) / torch.sqrt(v + eps)

def _scatter_add(tgt, idx, src, axis=0):
    return tgt.clone().index_add_(axis, idx, src)

def _segment_sum(src, seg, n):
    out = torch.zeros((n,) + src.shape[1:], dtype=src.dtype)
    return out.index_add_(0, seg, src)

def _pad(x, pw):
    flat = tuple((v for pair in reversed(pw) for v in pair))
    return torch.nn.functional.pad(x, flat)
kernel_name = 'adaLN_cond__spectral_gfnet__dense_activation_silu__prompt'

def setup_inputs():

    _w = lambda a: (lambda t: t.to(torch.bfloat16) if t.is_floating_point() else t)(torch.as_tensor(a))

    def _A_setup():
        B, S, D = (1, 2048, 512)
        Df = D // 2 + 1
        return {'x': _w((lambda *s: torch.randn(*s, dtype=torch.bfloat16) * 0.05)(B, S, D)), 'w_r': _w((lambda *s: torch.randn(*s, dtype=torch.bfloat16) * 1.6)(S, Df) * 0.02), 'w_i': _w((lambda *s: torch.randn(*s, dtype=torch.bfloat16) * 1.6)(S, Df) * 0.02)}
    _A_in = _A_setup()

    def _B_setup():
        B, S, D, F = (1, 2048, 512, 1792)
        return {'x': _w((lambda *s: torch.randn(*s, dtype=torch.bfloat16) * 0.05)(B, S, D)), 'w1': _w((lambda *s: torch.randn(*s, dtype=torch.bfloat16) * 0.8)(D, F) * D ** (-0.5)), 'w2': _w((lambda *s: torch.randn(*s, dtype=torch.bfloat16) * 0.2)(F, D) * F ** (-0.5))}
    _B_in = _B_setup()
    return {'A_x': _A_in['x'], 'A_w_r': _A_in['w_r'], 'A_w_i': _A_in['w_i'], 'B_x': _B_in['x'], 'B_w1': _B_in['w1'], 'B_w2': _B_in['w2'], 'c': _w((lambda *s: torch.randn(*s, dtype=torch.bfloat16) * 0.2)(1, 512) * 8.0), 'w_mod': _w((lambda *s: torch.randn(*s, dtype=torch.bfloat16) * 0.2)(512, 6 * 512) * 512 ** (-0.5) * 8.0)}

def reference(A_x, A_w_r, A_w_i, B_x, B_w1, B_w2, c, w_mod):

    def _A_ref(x, w_r, w_i):
        B, S, D = x.shape
        X = (lambda x, axes=(-2, -1): torch.fft.rfft2(x.float(), dim=axes))(x, axes=(-2, -1))
        W = w_r + 1j * w_i
        X = X * W
        y = (lambda x, s, axes=(-2, -1): torch.fft.irfft2(x, s=s, dim=axes).to(torch.bfloat16))(X, (S, D), axes=(-2, -1))
        return y

    def _B_ref(x, w1, w2):
        h = torch.einsum('bsd,df->bsf', x, w1)
        h = _silu(h)
        out = torch.einsum('bsf,fd->bsd', h, w2)
        return out
    x = A_x
    mod = (_silu(c) @ w_mod).reshape(c.shape[0], 6, 1, -1)
    sa, ca, ga, sb, cb, gb = (mod[:, 0].clone(), mod[:, 1].clone(), mod[:, 2].clone(), mod[:, 3].clone(), mod[:, 4].clone(), mod[:, 5].clone())
    h = _layernorm(x, axis=-1) * (1 + ca) + sa
    x = x + ga * _A_ref(h, A_w_r, A_w_i)
    h = _layernorm(x, axis=-1) * (1 + cb) + sb
    x = x + gb * _B_ref(h, B_w1, B_w2)
    return x
```

```python
import sys, math, struct

NAME = "adaLN_cond__spectral_gfnet__dense_activation_silu__prompt"

WS_MOD  = 0
WS_WT   = 0x10000
WS_W1P  = WS_WT + 257*8192 + 0
WS_W1P  = (WS_W1P + 0xFFFF) & ~0xFFFF
WS_W2P  = WS_W1P + 16*16*7*1024
WS_XD   = WS_W2P + 8*56*4*1024
WS_XD   = (WS_XD + 0xFFFF) & ~0xFFFF
WS_X1   = WS_XD + 257*16384
WS_X1   = (WS_X1 + 0xFFFF) & ~0xFFFF
WS_H2   = WS_X1 + 2048*1024
WS_HID  = WS_H2 + 2048*1024
WS_END  = WS_HID + 128*56*1024

def f2u(x):
    return struct.unpack("<I", struct.pack("<f", x))[0]

class G:
    def __init__(self):
        self.L = []
    def e(self, s):
        self.L.append("  " + s)
    def c(self, s):
        self.L.append("  ; " + s)
    def lab(self, s):
        self.L.append(s + ":")
    def raw(self, s):
        self.L.append(s)

def P(r):
    return f"v[{r}:{r+1}]"

def cadd(g, d, a, b):
    g.e(f"v_pk_add_f32 {P(d)}, {P(a)}, {P(b)}")
def csub(g, d, a, b):
    g.e(f"v_pk_add_f32 {P(d)}, {P(a)}, {P(b)} neg_lo:[0,1] neg_hi:[0,1]")
def cadd_mi(g, d, a, b):
    g.e(f"v_pk_add_f32 {P(d)}, {P(a)}, {P(b)} op_sel:[0,1] op_sel_hi:[1,0] neg_hi:[0,1]")
def cadd_pi(g, d, a, b):
    g.e(f"v_pk_add_f32 {P(d)}, {P(a)}, {P(b)} op_sel:[0,1] op_sel_hi:[1,0] neg_lo:[0,1]")
def cadd_s(g, d, a, b, sign):
    (cadd_mi if sign < 0 else cadd_pi)(g, d, a, b)
def cmul(g, d, a, w, t, conj=False):
    g.e(f"v_pk_mul_f32 {P(t)}, {P(a)}, {P(w)} op_sel:[0,0] op_sel_hi:[1,0]")
    if not conj:
        g.e(f"v_pk_fma_f32 {P(d)}, {P(a)}, {P(w)}, {P(t)} op_sel:[1,1,0] op_sel_hi:[0,1,1] neg_lo:[0,1,0]")
    else:
        g.e(f"v_pk_fma_f32 {P(d)}, {P(a)}, {P(w)}, {P(t)} op_sel:[1,1,0] op_sel_hi:[0,1,1] neg_hi:[0,1,0]")

def dft8(g, x, T, sign, K):
    x = list(x); T = list(T)
    for i in range(4):
        cadd(g, T[i], x[i], x[i+4])
        csub(g, x[i+4], x[i], x[i+4])
    cadd(g, x[0], T[0], T[2]); csub(g, x[1], T[0], T[2])
    cadd(g, x[2], T[1], T[3]); csub(g, x[3], T[1], T[3])
    cadd(g, T[0], x[0], x[2])
    csub(g, T[1], x[0], x[2])
    cadd_s(g, T[2], x[1], x[3], sign)
    cadd_s(g, T[3], x[1], x[3], -sign)
    cadd_s(g, x[0], x[4], x[6], sign)
    cadd_s(g, x[1], x[4], x[6], -sign)
    cadd_s(g, x[2], x[5], x[5], sign)
    cadd_s(g, x[3], x[7], x[7], -sign)
    csub(g, x[4], x[2], x[3])
    cadd(g, x[5], x[2], x[3])
    g.e(f"v_pk_fma_f32 {P(x[6])}, {P(x[4])}, {K}, {P(x[0])}")
    g.e(f"v_pk_fma_f32 {P(x[7])}, {P(x[4])}, {K}, {P(x[0])} neg_lo:[1,0,0] neg_hi:[1,0,0]")
    mi = f"op_sel:[1,0,0] op_sel_hi:[0,1,1] neg_hi:[1,0,0]"
    pi = f"op_sel:[1,0,0] op_sel_hi:[0,1,1] neg_lo:[1,0,0]"
    g.e(f"v_pk_fma_f32 {P(x[2])}, {P(x[5])}, {K}, {P(x[1])} " + (mi if sign < 0 else pi))
    g.e(f"v_pk_fma_f32 {P(x[3])}, {P(x[5])}, {K}, {P(x[1])} " + (pi if sign < 0 else mi))
    y = [T[0], x[6], T[2], x[2], T[1], x[7], T[3], x[3]]
    free = [x[0], x[1], x[4], x[5]]
    return y, free

def dft4(g, x, T, sign):
    cadd(g, T[0], x[0], x[2]); csub(g, x[2], x[0], x[2])
    cadd(g, T[1], x[1], x[3]); csub(g, x[3], x[1], x[3])
    cadd(g, x[0], T[0], T[1])
    csub(g, x[1], T[0], T[1])
    cadd_s(g, T[0], x[2], x[3], sign)
    cadd_s(g, T[1], x[2], x[3], -sign)
    return [x[0], T[0], x[1], T[1]], [x[2], x[3]]

def gen_tw(g, tw, vaf, mults, tmp):
    for r, m in zip(tw, mults):
        if m == 1:
            g.e(f"v_cos_f32 v{r}, v{vaf}")
            g.e(f"v_sin_f32 v{r+1}, -v{vaf}")
        else:
            g.e(f"v_mul_f32 v{tmp}, {float(m)!r}, v{vaf}" if m in (2,4) else f"v_mul_f32 v{tmp}, 0x{f2u(float(m)):08x}, v{vaf}")
            g.e(f"v_cos_f32 v{r}, v{tmp}")
            g.e(f"v_sin_f32 v{r+1}, -v{tmp}")

def srd(g, s, base_lo, off, size):
    if off:
        g.e(f"s_add_u32 s{s}, s{base_lo}, 0x{off:x}")
        g.e(f"s_addc_u32 s{s+1}, s{base_lo+1}, 0")
    else:
        g.e(f"s_mov_b32 s{s}, s{base_lo}")
        g.e(f"s_mov_b32 s{s+1}, s{base_lo+1}")
    g.e(f"s_mov_b32 s{s+2}, 0x{size:x}")
    g.e(f"s_mov_b32 s{s+3}, 0x00020000")

def allreduce32(g, v, t):
    for pat in ("quad_perm:[1,0,3,2]", "quad_perm:[2,3,0,1]", "row_half_mirror", "row_mirror"):
        g.e("s_nop 1")
        g.e(f"v_add_f32_dpp v{v}, v{v}, v{v} {pat} row_mask:0xf bank_mask:0xf")
    g.e(f"v_mov_b32 v{t}, v{v}")
    g.e("s_nop 1")
    g.e(f"v_permlane16_swap_b32 v{v}, v{t}")
    g.e("s_nop 1")
    g.e(f"v_add_f32 v{v}, v{v}, v{t}")

def round_pair(g, a, t):
    g.e(f"v_cvt_pk_bf16_f32 v{t}, v{a}, v{a+1}")
    g.e(f"v_lshlrev_b32 v{a}, 16, v{t}")
    g.e(f"v_and_b32 v{a+1}, 0xffff0000, v{t}")

def round1(g, a):
    g.e(f"v_cvt_pk_bf16_f32 v{a}, v{a}, v{a}")
    g.e(f"v_lshlrev_b32 v{a}, 16, v{a}")

def kernel_footer(g, name, vgpr, sgpr=100, accum=None):
    if accum is None:
        accum = (vgpr + 3)//4*4
    return f""".amdhsa_kernel {name}
  .amdhsa_next_free_vgpr {vgpr}
  .amdhsa_next_free_sgpr {sgpr}
  .amdhsa_accum_offset {accum}
  .amdhsa_group_segment_fixed_size 0
  .amdhsa_kernarg_size 88
  .amdhsa_user_sgpr_count 2
  .amdhsa_user_sgpr_kernarg_segment_ptr 1
  .amdhsa_system_sgpr_workgroup_id_x 1
.end_amdhsa_kernel
"""

def kernel_header(g, name):
    g.raw(f".globl {name}")
    g.raw(".p2align 8")
    g.raw(f".type {name},@function")
    g.raw(f"{name}:")

def ln_mod(g, z, sc, sh, t0, t1, t2, t3, tp):
    g.e(f"v_pk_add_f32 {P(tp)}, {P(z[0])}, {P(z[1])}")
    for j in range(2, 8):
        g.e(f"v_pk_add_f32 {P(tp)}, {P(tp)}, {P(z[j])}")
    g.e(f"v_add_f32 v{t0}, v{tp}, v{tp+1}")
    allreduce32(g, t0, t1)
    g.e(f"v_mul_f32 v{t0}, 0x{f2u(1/512):08x}, v{t0}")
    g.e(f"v_mov_b32 v{t1}, v{t0}")
    g.e(f"v_mov_b32 v{t2}, 0")
    g.e(f"v_mov_b32 v{t3}, 0")
    for j in range(8):
        g.e(f"v_pk_add_f32 {P(tp)}, {P(z[j])}, {P(t0)} neg_lo:[0,1] neg_hi:[0,1]")
        g.e(f"v_pk_fma_f32 {P(t2)}, {P(tp)}, {P(tp)}, {P(t2)}")
    g.e(f"v_add_f32 v{t2}, v{t2}, v{t3}")
    allreduce32(g, t2, t3)
    g.e(f"v_mul_f32 v{t2}, 0x{f2u(1/512):08x}, v{t2}")
    round1(g, t2)
    g.e(f"v_add_f32 v{t2}, 0x{f2u(1e-5):08x}, v{t2}")
    round1(g, t2)
    g.e(f"v_sqrt_f32 v{t2}, v{t2}")
    g.e("s_nop 0")
    round1(g, t2)
    g.e(f"v_rcp_f32 v{t2}, v{t2}")
    round1(g, t0)
    g.e(f"v_mov_b32 v{t1}, v{t0}")
    g.e(f"v_mov_b32 v{t3}, v{t2}")
    for j in range(8):
        g.e(f"v_pk_add_f32 {P(z[j])}, {P(z[j])}, {P(t0)} neg_lo:[0,1] neg_hi:[0,1]")
        round_pair(g, z[j], tp)
        g.e(f"v_pk_mul_f32 {P(z[j])}, {P(z[j])}, {P(t2)}")
        round_pair(g, z[j], tp)
        g.e(f"v_pk_mul_f32 {P(z[j])}, {P(z[j])}, {P(sc[j])}")
        round_pair(g, z[j], tp)
        g.e(f"v_pk_add_f32 {P(z[j])}, {P(z[j])}, {P(sh[j])}")
        round_pair(g, z[j], tp)

N_MOD, N_W1, N_W2, N_WT = 48, 256, 224, 320
L0_GRID = N_MOD + N_W1 + N_W2 + N_WT

def gen_prep(g):
    name = "prep_kernel"
    kernel_header(g, name)
    g.e(f"s_cmp_ge_u32 s2, {L0_GRID}")
    g.e("s_cbranch_scc1 prep_done")
    g.e("s_load_dwordx2 s[4:5], s[0:1], 80")
    g.e(f"s_cmp_ge_u32 s2, {N_MOD}")
    g.e("s_cbranch_scc1 prep_w1")
    g.e("s_load_dwordx4 s[8:11], s[0:1], 48")
    g.e("s_waitcnt lgkmcnt(0)")
    srd(g, 12, 8, 0, 1024)
    srd(g, 16, 10, 0, 512*6144)
    srd(g, 20, 4, WS_MOD, 3072*4)
    g.e("v_lshrrev_b32 v1, 3, v0")
    g.e("v_and_b32 v2, 7, v0")
    g.e("v_lshlrev_b32 v3, 1, v1")
    g.e("s_movk_i32 s24, 6144")
    g.e("v_mul_lo_u32 v4, v1, s24")
    g.e("s_lshl_b32 s25, s2, 7")
    g.e("v_lshl_add_u32 v4, v2, 4, v4")
    g.e("v_add_u32 v4, s25, v4")
    for i in range(16):
        g.e(f"buffer_load_ushort v{16+i}, v3, s[12:15], 0 offen offset:{64*i}")
    g.e("s_mov_b32 s26, 0")
    for i in range(16):
        g.e(f"buffer_load_dwordx4 v[{32+4*i}:{35+4*i}], v4, s[16:19], s26 offen")
        g.e(f"s_add_u32 s26, s26, {32*6144}")
    for i in range(8):
        g.e(f"v_mov_b32 v{8+i}, 0")
    g.e("s_waitcnt vmcnt(16)")
    for i in range(16):
        r = 16+i
        g.e(f"v_lshlrev_b32 v{r}, 16, v{r}")
        g.e(f"v_mul_f32 v5, 0x{f2u(-math.log2(math.e)):08x}, v{r}")
        g.e(f"v_exp_f32 v5, v5")
        g.e("s_nop 0")
        g.e(f"v_add_f32 v5, 1.0, v5")
        g.e(f"v_rcp_f32 v5, v5")
        g.e("s_nop 0")
        g.e(f"v_mul_f32 v{r}, v{r}, v5")
        round1(g, r)
    for i in range(16):
        g.e(f"s_waitcnt vmcnt({15-i})")
        for q in range(4):
            w = 32+4*i+q
            g.e(f"v_lshlrev_b32 v5, 16, v{w}")
            g.e(f"v_and_b32 v6, 0xffff0000, v{w}")
            g.e(f"v_fmac_f32 v{8+2*q}, v{16+i}, v5")
            g.e(f"v_fmac_f32 v{9+2*q}, v{16+i}, v6")
    g.e("v_lshlrev_b32 v5, 8, v1")
    g.e("v_lshl_add_u32 v5, v2, 5, v5")
    g.e("ds_write_b128 v5, v[8:11]")
    g.e("ds_write_b128 v5, v[12:15] offset:16")
    g.e("s_waitcnt lgkmcnt(0)")
    g.e("s_barrier")
    g.e("v_cmp_gt_u32 vcc, 64, v0")
    g.e("s_and_saveexec_b64 s[28:29], vcc")
    g.e("s_cbranch_execz prep_done")
    g.e("v_lshlrev_b32 v5, 2, v0")
    for i in range(32):
        g.e(f"ds_read_b32 v{32+i}, v5 offset:{256*i}")
    g.e("s_waitcnt lgkmcnt(0)")
    for st in (16, 8, 4, 2, 1):
        for i in range(st):
            g.e(f"v_add_f32 v{32+i}, v{32+i}, v{32+i+st}")
    round1(g, 32)
    g.e("s_lshr_b32 s26, s2, 3")
    g.e("s_cmp_eq_u32 s26, 1")
    g.e("s_cselect_b32 s27, 1, 0")
    g.e("s_cmp_eq_u32 s26, 4")
    g.e("s_cselect_b32 s27, 1, s27")
    g.e("s_cmp_eq_u32 s27, 0")
    g.e("s_cbranch_scc1 prep_mod_st")
    g.e("v_add_f32 v32, 1.0, v32")
    round1(g, 32)
    g.lab("prep_mod_st")
    g.e("s_lshl_b32 s26, s2, 8")
    g.e("v_add_u32 v5, s26, v5")
    g.e("buffer_store_dword v32, v5, s[20:23], 0 offen")
    g.e("s_branch prep_done")

    g.lab("prep_w1")
    g.e(f"s_cmp_ge_u32 s2, {N_MOD+N_W1}")
    g.e("s_cbranch_scc1 prep_w2")
    g.e("s_load_dwordx2 s[8:9], s[0:1], 32")
    g.e("s_waitcnt lgkmcnt(0)")
    srd(g, 12, 8, 0, 512*3584)
    srd(g, 16, 4, WS_W1P, 16*16*7*1024)
    g.e(f"s_sub_u32 s24, s2, {N_MOD}")
    g.e("s_and_b32 s25, s24, 15")
    g.e("s_lshr_b32 s26, s24, 4")
    g.e("v_cmp_gt_u32 vcc, 224, v0")
    g.e("s_and_saveexec_b64 s[28:29], vcc")
    g.e("s_cbranch_execz prep_done")
    g.e("v_and_b32 v1, 7, v0")
    g.e("v_bfe_u32 v2, v0, 3, 2")
    g.e("v_lshrrev_b32 v3, 5, v0")
    g.e("s_lshl_b32 s27, s26, 5")
    g.e("v_lshl_add_u32 v4, v2, 3, s27")
    g.e("s_movk_i32 s30, 3584")
    g.e("v_mul_lo_u32 v4, v4, s30")
    g.e("s_mul_i32 s31, s25, 224")
    g.e("v_lshl_add_u32 v5, v3, 5, s31")
    g.e("v_lshl_add_u32 v5, v1, 2, v5")
    g.e("v_add_u32 v4, v4, v5")
    g.e("s_mov_b32 s32, 0")
    for e in range(8):
        g.e(f"buffer_load_dword v{8+e}, v4, s[12:15], s32 offen")
        g.e(f"s_add_u32 s32, s32, 3584")
    g.e("s_lshl_b32 s33, s25, 4")
    g.e("s_add_u32 s33, s33, s26")
    g.e("s_mul_i32 s33, s33, 7168")
    g.e("v_lshl_add_u32 v6, v3, 10, s33")
    g.e("v_lshl_add_u32 v6, v2, 8, v6")
    g.e("v_lshl_add_u32 v6, v1, 5, v6")
    g.e("s_mov_b32 s34, 0x05040100")
    g.e("s_mov_b32 s35, 0x07060302")
    g.e("s_waitcnt vmcnt(0)")
    for q in range(4):
        g.e(f"v_perm_b32 v{16+q}, v{9+2*q}, v{8+2*q}, s34")
        g.e(f"v_perm_b32 v{20+q}, v{9+2*q}, v{8+2*q}, s35")
    g.e("buffer_store_dwordx4 v[16:19], v6, s[16:19], 0 offen")
    g.e("buffer_store_dwordx4 v[20:23], v6, s[16:19], 0 offen offset:16")
    g.e("s_branch prep_done")

    g.lab("prep_w2")
    g.e(f"s_cmp_ge_u32 s2, {N_MOD+N_W1+N_W2}")
    g.e("s_cbranch_scc1 prep_wt")
    g.e("s_load_dwordx2 s[8:9], s[0:1], 40")
    g.e("s_waitcnt lgkmcnt(0)")
    srd(g, 12, 8, 0, 1792*1024)
    srd(g, 16, 4, WS_W2P, 8*56*4*1024)
    g.e(f"s_sub_u32 s24, s2, {N_MOD+N_W1}")
    g.e("s_and_b32 s25, s24, 7")
    g.e("s_lshr_b32 s26, s24, 3")
    g.e("v_and_b32 v1, 7, v0")
    g.e("v_bfe_u32 v2, v0, 3, 2")
    g.e("v_bfe_u32 v3, v0, 5, 2")
    g.e("v_lshrrev_b32 v7, 7, v0")
    g.e("s_lshl_b32 s27, s26, 1")
    g.e("v_add_u32 v7, s27, v7")
    g.e("v_lshlrev_b32 v4, 5, v7")
    g.e("v_lshl_add_u32 v4, v2, 3, v4")
    g.e("v_lshlrev_b32 v4, 10, v4")
    g.e("s_lshl_b32 s31, s25, 7")
    g.e("v_lshl_add_u32 v5, v3, 5, s31")
    g.e("v_lshl_add_u32 v5, v1, 2, v5")
    g.e("v_add_u32 v4, v4, v5")
    for e in range(8):
        g.e(f"buffer_load_dword v{8+e}, v4, s[12:15], 0 offen offset:{1024*e}" if e < 4 else
            f"buffer_load_dword v{8+e}, v4, s[12:15], s36 offen offset:{1024*(e-4)}")
        if e == 0:
            g.e("s_movk_i32 s36, 4096")
    g.e("s_mul_i32 s33, s25, 56")
    g.e("v_add_u32 v6, s33, v7")
    g.e("v_lshlrev_b32 v6, 12, v6")
    g.e("v_lshl_add_u32 v6, v3, 10, v6")
    g.e("v_lshl_add_u32 v6, v2, 8, v6")
    g.e("v_lshl_add_u32 v6, v1, 5, v6")
    g.e("s_mov_b32 s34, 0x05040100")
    g.e("s_mov_b32 s35, 0x07060302")
    g.e("s_waitcnt vmcnt(0)")
    for q in range(4):
        g.e(f"v_perm_b32 v{16+q}, v{9+2*q}, v{8+2*q}, s34")
        g.e(f"v_perm_b32 v{20+q}, v{9+2*q}, v{8+2*q}, s35")
    g.e("buffer_store_dwordx4 v[16:19], v6, s[16:19], 0 offen")
    g.e("buffer_store_dwordx4 v[20:23], v6, s[16:19], 0 offen offset:16")
    g.e("s_branch prep_done")

    g.lab("prep_wt")
    g.e("s_load_dwordx4 s[8:11], s[0:1], 8")
    g.e("s_waitcnt lgkmcnt(0)")
    srd(g, 12, 8, 0, 2048*514)
    srd(g, 16, 10, 0, 2048*514)
    srd(g, 20, 4, WS_WT, 257*8192)
    g.e(f"s_sub_u32 s24, s2, {N_MOD+N_W1+N_W2}")
    g.e("s_and_b32 s25, s24, 7")
    g.e("s_lshr_b32 s26, s24, 3")
    g.e("s_and_b32 s27, s26, 7")
    g.e("s_lshr_b32 s26, s26, 3")
    g.e("v_and_b32 v1, 63, v0")
    g.e("s_lshl_b32 s28, s26, 6")
    g.e("v_add_u32 v1, s28, v1")
    g.e("v_cmp_gt_u32 vcc, 257, v1")
    g.e("s_and_saveexec_b64 s[30:31], vcc")
    g.e("s_cbranch_execz prep_done")
    g.e("v_lshrrev_b32 v2, 6, v0")
    g.e("s_lshr_b32 s29, s25, 1")
    g.e("s_lshl_b32 s29, s29, 9")
    g.e("s_and_b32 s32, s25, 1")
    g.e("s_lshl_b32 s32, s32, 6")
    g.e("s_add_u32 s29, s29, s32")
    g.e("s_add_u32 s29, s29, s27")
    g.e("v_lshl_add_u32 v3, v2, 3, s29")
    g.e("s_movk_i32 s33, 514")
    g.e("v_mul_lo_u32 v3, v3, s33")
    g.e("v_lshl_add_u32 v3, v1, 1, v3")
    for pp in range(2):
        for c2 in range(4):
            off = (32*pp + 128*c2)*514
            g.e(f"s_mov_b32 s34, {off}")
            g.e(f"buffer_load_ushort v{8+8*pp+c2}, v3, s[12:15], s34 offen")
            g.e(f"buffer_load_ushort v{12+8*pp+c2}, v3, s[16:19], s34 offen")
    g.e("v_lshlrev_b32 v4, 13, v1")
    g.e("s_lshl_b32 s35, s25, 10")
    g.e("s_lshl_b32 s36, s27, 7")
    g.e("s_add_u32 s35, s35, s36")
    g.e("v_add_u32 v4, s35, v4")
    g.e("v_lshl_add_u32 v4, v2, 4, v4")
    g.e("s_waitcnt vmcnt(0)")
    for pp in range(2):
        for c2 in range(4):
            g.e(f"v_lshl_or_b32 v{8+8*pp+c2}, v{12+8*pp+c2}, 16, v{8+8*pp+c2}")
    g.e("buffer_store_dwordx4 v[8:11], v4, s[20:23], 0 offen")
    g.e("buffer_store_dwordx4 v[16:19], v4, s[20:23], 0 offen offset:64")
    g.lab("prep_done")
    g.e("s_endpgm")
    return kernel_footer(g, name, 104)

KS = "s[60:61]"

def set_k(g):
    g.e(f"s_mov_b32 s60, 0x{f2u(math.sqrt(0.5)):08x}")
    g.e(f"s_mov_b32 s61, 0x{f2u(math.sqrt(0.5)):08x}")

def split_pair(g, a, b, w, E, D, T, oa, ob):
    g.e(f"v_pk_add_f32 {P(E)}, {P(a)}, {P(b)} neg_hi:[0,1]")
    g.e(f"v_pk_add_f32 {P(D)}, {P(a)}, {P(b)} neg_lo:[0,1]")
    g.e(f"v_pk_mul_f32 {P(T)}, {P(D)}, {w} op_sel:[1,0] op_sel_hi:[0,0] neg_hi:[1,0]")
    g.e(f"v_pk_fma_f32 {P(T)}, {P(D)}, {w}, {P(T)} op_sel:[0,1,0] op_sel_hi:[1,1,1]")
    g.e(f"v_pk_add_f32 {P(oa)}, {P(E)}, {P(T)}")
    g.e(f"v_pk_add_f32 {P(ob)}, {P(E)}, {P(T)} neg_lo:[0,1] neg_hi:[1,0]")

def merge_pair(g, a, b, w, E, D, T, oa, ob):
    g.e(f"v_pk_add_f32 {P(E)}, {P(a)}, {P(b)} neg_hi:[0,1]")
    g.e(f"v_pk_add_f32 {P(D)}, {P(a)}, {P(b)} neg_lo:[0,1]")
    g.e(f"v_pk_mul_f32 {P(T)}, {P(D)}, {w} op_sel:[1,0] op_sel_hi:[0,0] neg_lo:[1,0]")
    g.e(f"v_pk_fma_f32 {P(T)}, {P(D)}, {w}, {P(T)} op_sel:[0,1,0] op_sel_hi:[1,1,1]")
    g.e(f"v_pk_add_f32 {P(oa)}, {P(E)}, {P(T)}")
    g.e(f"v_pk_add_f32 {P(ob)}, {P(E)}, {P(T)} neg_lo:[0,1] neg_hi:[1,0]")

LDS_X1 = 0
LDS_F  = 8*2304
F_RS   = 2064

def const_tw(g, s, k, N):
    ang = -2*math.pi*k/N
    g.e(f"s_mov_b32 s{s}, 0x{f2u(math.cos(ang)):08x}")
    g.e(f"s_mov_b32 s{s+1}, 0x{f2u(math.sin(ang)):08x}")

def gen_l1(g):
    name = "rowfft_kernel"
    kernel_header(g, name)
    g.e("s_cmp_ge_u32 s2, 256")
    g.e("s_cbranch_scc1 l1_done")
    g.e("s_load_dwordx2 s[4:5], s[0:1], 80")
    g.e("s_load_dwordx2 s[6:7], s[0:1], 0")
    set_k(g)
    g.e("v_and_b32 v1, 31, v0")
    g.e("v_lshrrev_b32 v2, 5, v0")
    g.e("s_lshl_b32 s3, s2, 13")
    g.e("v_lshl_add_u32 v3, v2, 10, s3")
    g.e("v_lshl_add_u32 v3, v1, 2, v3")
    g.e("v_lshlrev_b32 v4, 3, v1")
    g.e("s_waitcnt lgkmcnt(0)")
    srd(g, 8, 6, 0, 2048*1024)
    srd(g, 12, 4, WS_MOD, 3072*4)
    srd(g, 16, 4, WS_XD, 257*16384)
    Z = [16+2*j for j in range(8)]
    T = [32, 34, 36, 38]
    XR = [40+j for j in range(8)]
    SC = [48+2*j for j in range(8)]
    SH = [64+2*j for j in range(8)]
    TW1 = [80+2*j for j in range(7)]
    TW2 = [94+2*j for j in range(7)]
    TWS = [108+2*j for j in range(4)]
    for j in range(8):
        g.e(f"buffer_load_dword v{XR[j]}, v3, s[8:11], 0 offen offset:{128*j}")
    for j in range(8):
        g.e(f"buffer_load_dwordx2 {P(SH[j])}, v4, s[12:15], 0 offen offset:{256*j}")
        g.e(f"buffer_load_dwordx2 {P(SC[j])}, v4, s[12:15], 0 offen offset:{2048+256*j}")
    g.e("v_cvt_f32_u32 v5, v1")
    g.e(f"v_mul_f32 v5, 0x{f2u(1/256):08x}, v5")
    gen_tw(g, TW1, 5, range(1, 8), 6)
    g.e("v_and_b32 v7, 3, v0")
    g.e("v_cvt_f32_u32 v5, v7")
    g.e(f"v_mul_f32 v5, 0x{f2u(1/32):08x}, v5")
    gen_tw(g, TW2, 5, range(1, 8), 6)
    g.e("v_lshrrev_b32 v8, 3, v0")
    g.e("v_cvt_f32_u32 v5, v8")
    g.e(f"v_mul_f32 v5, 0x{f2u(1/512):08x}, v5")
    for q in range(4):
        g.e(f"v_add_f32 v6, 0x{f2u(q/8):08x}, v5")
        g.e(f"v_cos_f32 v{TWS[q]}, v6")
        g.e(f"v_sin_f32 v{TWS[q]+1}, -v6")
    g.e("v_mul_u32_u24 v9, 2304, v2")
    g.e("v_lshl_add_u32 v10, v1, 3, v9")
    g.e("v_bfe_u32 v11, v0, 2, 3")
    g.e("v_mul_u32_u24 v12, 288, v11")
    g.e("v_add_u32 v12, v12, v9")
    g.e("v_lshl_add_u32 v12, v7, 3, v12")
    g.e(f"v_mul_u32_u24 v13, {F_RS}, v2")
    g.e("v_lshl_add_u32 v13, v11, 5, v13")
    g.e("v_lshl_add_u32 v13, v7, 3, v13")
    g.e(f"v_add_u32 v13, {LDS_F}, v13")
    g.e("s_waitcnt vmcnt(16)")
    for j in range(8):
        g.e(f"v_lshlrev_b32 v{Z[j]}, 16, v{XR[j]}")
        g.e(f"v_and_b32 v{Z[j]+1}, 0xffff0000, v{XR[j]}")
    g.e("s_waitcnt vmcnt(0)")
    ln_mod(g, Z, SC, SH, 120, 121, 122, 123, 124)
    y, free = dft8(g, Z, T, -1, KS)
    for r in range(1, 8):
        cmul(g, y[r], y[r], TW1[r-1], free[0])
    for r in range(8):
        g.e(f"ds_write_b64 v10, {P(y[r])} offset:{288*r}")
    allr = y + free
    x = allr[:8]; T2 = allr[8:]
    for t1 in range(8):
        g.e(f"ds_read_b64 {P(x[t1])}, v12 offset:{32*t1}")
    g.e("s_waitcnt lgkmcnt(0)")
    y, free = dft8(g, x, T2, -1, KS)
    for p in range(1, 8):
        cmul(g, y[p], y[p], TW2[p-1], free[0])
    for p in range(8):
        g.e(f"ds_write_b64 v13, {P(y[p])} offset:{256*p}")
    g.e("s_waitcnt lgkmcnt(0)")
    g.e("s_barrier")
    g.e("v_and_b32 v14, 7, v0")
    g.e(f"v_mul_u32_u24 v15, {F_RS}, v14")
    g.e(f"v_add_u32 v15, {LDS_F}, v15")
    g.e("v_sub_u32 v9, 64, v8")
    g.e("v_cmp_eq_u32 vcc, 0, v8")
    g.e("v_mov_b32 v10, 32")
    g.e("s_nop 1")
    g.e("v_cndmask_b32 v9, v9, v10, vcc")
    g.e("v_lshl_add_u32 v10, v8, 5, v15")
    g.e("v_lshl_add_u32 v11, v9, 5, v15")
    A = [16, 18, 20, 22]; B = [24, 26, 28, 30]
    g.e("ds_read_b128 v[16:19], v10")
    g.e("ds_read_b128 v[20:23], v10 offset:16")
    g.e("ds_read_b128 v[24:27], v11")
    g.e("ds_read_b128 v[28:31], v11 offset:16")
    g.e("s_lshl_b32 s3, s2, 6")
    g.e("v_lshl_add_u32 v12, v14, 3, s3")
    g.e("v_lshl_add_u32 v13, v8, 14, v12")
    g.e("v_lshl_add_u32 v14, v9, 14, v12")
    for q in range(4):
        g.e(f"s_mov_b32 s{40+q}, 0x{q*64*16384:x}")
    g.e("s_waitcnt lgkmcnt(0)")
    ZA, fr = dft4(g, A, [32, 34], -1)
    ZB, fr2 = dft4(g, B, [36, 38], -1)
    E, D, Tt = 40, 42, 44
    OA, OB = 46, 48
    g.e("s_mov_b64 s[50:51], exec")
    g.e("s_andn2_b64 exec, exec, vcc")
    for q in range(4):
        oa, ob = 46+4*q, 48+4*q
        split_pair(g, ZA[q], ZB[3-q], P(TWS[q]), E, D, Tt, oa, ob)
        g.e(f"buffer_store_dwordx2 {P(oa)}, v13, s[16:19], s{40+q} offen")
        g.e(f"buffer_store_dwordx2 {P(ob)}, v14, s[16:19], s{40+3-q} offen")
    g.e("s_and_b64 exec, s[50:51], vcc")
    g.e("s_cbranch_execz l1_done")
    pairs = [(ZA[0], ZA[0], 0, 256), (ZA[1], ZA[3], 64, 192), (ZA[2], ZA[2], 128, None),
             (ZB[0], ZB[3], 32, 224), (ZB[1], ZB[2], 96, 160)]
    for n, (a, b, k, k2) in enumerate(pairs):
        oa, ob = 64+4*n, 66+4*n
        const_tw(g, 52, k, 512)
        split_pair(g, a, b, "s[52:53]", E, D, Tt, oa, ob)
        g.e(f"s_mov_b32 s54, 0x{k*16384:x}")
        g.e(f"buffer_store_dwordx2 {P(oa)}, v12, s[16:19], s54 offen")
        if k2 is not None:
            g.e(f"s_mov_b32 s54, 0x{k2*16384:x}")
            g.e(f"buffer_store_dwordx2 {P(ob)}, v12, s[16:19], s54 offen")
    g.lab("l1_done")
    g.e("s_endpgm")
    return kernel_footer(g, name, 128)

def gen_l2(g):
    name = "colfft_kernel"
    kernel_header(g, name)
    g.e("s_cmp_ge_u32 s2, 257")
    g.e("s_cbranch_scc1 l2_done")
    g.e("s_load_dwordx2 s[4:5], s[0:1], 80")
    set_k(g)
    g.e("s_lshl_b32 s3, s2, 14")
    g.e("v_lshl_add_u32 v1, v0, 3, s3")
    g.e("s_lshl_b32 s3, s2, 13")
    g.e("v_lshl_add_u32 v2, v0, 2, s3")
    g.e("s_waitcnt lgkmcnt(0)")
    srd(g, 8, 4, WS_XD, 257*16384)
    srd(g, 12, 4, WS_WT, 257*8192)
    Z = [16+2*j for j in range(8)]
    T = [32, 34, 36, 38]
    WR = [40+j for j in range(8)]
    TW1 = [48+2*j for j in range(7)]
    TW2 = [62+2*j for j in range(7)]
    TW3 = [76+2*j for j in range(7)]
    g.e("s_movk_i32 s16, 2048")
    g.e("s_movk_i32 s17, 4096")
    g.e("s_movk_i32 s18, 6144")
    for j in range(8):
        so = ["0", "s17", "s17", "0"]
        if j < 2:
            g.e(f"buffer_load_dwordx2 {P(Z[j])}, v1, s[8:11], 0 offen offset:{2048*j}")
        else:
            g.e(f"s_movk_i32 s19, {2048*j}")
            g.e(f"buffer_load_dwordx2 {P(Z[j])}, v1, s[8:11], s19 offen")
    for i in range(8):
        if i < 4:
            g.e(f"buffer_load_dword v{WR[i]}, v2, s[12:15], 0 offen offset:{1024*i}")
        else:
            g.e(f"buffer_load_dword v{WR[i]}, v2, s[12:15], s17 offen offset:{1024*(i-4)}")
    g.e("v_cvt_f32_u32 v5, v0")
    g.e(f"v_mul_f32 v5, 0x{f2u(1/2048):08x}, v5")
    gen_tw(g, TW1, 5, range(1, 8), 6)
    g.e("v_and_b32 v7, 31, v0")
    g.e("v_cvt_f32_u32 v5, v7")
    g.e(f"v_mul_f32 v5, 0x{f2u(1/256):08x}, v5")
    gen_tw(g, TW2, 5, range(1, 8), 6)
    g.e("v_and_b32 v8, 3, v0")
    g.e("v_cvt_f32_u32 v5, v8")
    g.e(f"v_mul_f32 v5, 0x{f2u(1/32):08x}, v5")
    gen_tw(g, TW3, 5, range(1, 8), 6)
    g.e("v_lshlrev_b32 v9, 3, v0")
    g.e("v_lshrrev_b32 v10, 5, v0")
    g.e("v_lshlrev_b32 v11, 11, v10")
    g.e("v_lshl_add_u32 v11, v7, 3, v11")
    g.e("v_mul_u32_u24 v12, 2304, v10")
    g.e("v_add_u32 v12, 16384, v12")
    g.e("v_lshl_add_u32 v13, v7, 3, v12")
    g.e("v_bfe_u32 v14, v0, 2, 3")
    g.e("v_mul_u32_u24 v14, 288, v14")
    g.e("v_add_u32 v14, v14, v12")
    g.e("v_lshl_add_u32 v15, v8, 6, v14")
    g.e("v_lshl_add_u32 v14, v8, 3, v14")
    g.e("s_waitcnt vmcnt(8)")
    y, free = dft8(g, Z, T, -1, KS)
    for r in range(1, 8):
        cmul(g, y[r], y[r], TW1[r-1], free[0])
    for r in range(8):
        g.e(f"ds_write_b64 v9, {P(y[r])} offset:{2048*r}")
    g.e("s_waitcnt lgkmcnt(0)")
    g.e("s_barrier")
    allr = y + free; x = allr[:8]; T2 = allr[8:]
    for t1 in range(8):
        g.e(f"ds_read_b64 {P(x[t1])}, v11 offset:{256*t1}")
    g.e("s_waitcnt lgkmcnt(0)")
    y, free = dft8(g, x, T2, -1, KS)
    for p in range(1, 8):
        cmul(g, y[p], y[p], TW2[p-1], free[0])
    for p in range(8):
        g.e(f"ds_write_b64 v13, {P(y[p])} offset:{288*p}")
    allr = y + free; x = allr[:8]; T2 = allr[8:]
    for b in range(8):
        g.e(f"ds_read_b64 {P(x[b])}, v14 offset:{32*b}")
    g.e("s_waitcnt lgkmcnt(0)")
    y, free = dft8(g, x, T2, -1, KS)
    for c in range(1, 8):
        cmul(g, y[c], y[c], TW3[c-1], free[0])
    for c in range(8):
        g.e(f"ds_write_b64 v14, {P(y[c])} offset:{32*c}")
    g.e("s_waitcnt lgkmcnt(0)")
    for i in range(4):
        g.e(f"ds_read_b128 v[{16+4*i}:{19+4*i}], v15 offset:{16*i}")
    g.e("s_waitcnt lgkmcnt(0)")
    Y0, f0 = dft4(g, [16, 18, 20, 22], [32, 34], -1)
    Y1, f1 = dft4(g, [24, 26, 28, 30], [36, 38], -1)
    g.e("s_waitcnt vmcnt(0)")
    tw = 90; tt = 92
    for q in range(4):
        for e, Y in ((0, Y0), (1, Y1)):
            wr = WR[q*2+e]
            g.e(f"v_lshlrev_b32 v{tw}, 16, v{wr}")
            g.e(f"v_and_b32 v{tw+1}, 0xffff0000, v{wr}")
            cmul(g, Y[q], Y[q], tw, tt)
    A0, f0 = dft4(g, Y0, f0, +1)
    A1, f1 = dft4(g, Y1, f1, +1)
    for a in range(4):
        g.e(f"ds_write_b64 v15, {P(A0[a])} offset:{8*a}")
        g.e(f"ds_write_b64 v15, {P(A1[a])} offset:{32+8*a}")
    x = Z; T2 = T
    for c in range(8):
        g.e(f"ds_read_b64 {P(x[c])}, v14 offset:{32*c}")
    g.e("s_waitcnt lgkmcnt(0)")
    for c in range(1, 8):
        cmul(g, x[c], x[c], TW3[c-1], T2[0], conj=True)
    y, free = dft8(g, x, T2, +1, KS)
    for b in range(8):
        g.e(f"ds_write_b64 v14, {P(y[b])} offset:{32*b}")
    allr = y + free; x = allr[:8]; T2 = allr[8:]
    for p in range(8):
        g.e(f"ds_read_b64 {P(x[p])}, v13 offset:{288*p}")
    g.e("s_waitcnt lgkmcnt(0)")
    for p in range(1, 8):
        cmul(g, x[p], x[p], TW2[p-1], T2[0], conj=True)
    y, free = dft8(g, x, T2, +1, KS)
    for t1 in range(8):
        g.e(f"ds_write_b64 v11, {P(y[t1])} offset:{256*t1}")
    g.e("s_waitcnt lgkmcnt(0)")
    g.e("s_barrier")
    allr = y + free; x = allr[:8]; T2 = allr[8:]
    for r in range(8):
        g.e(f"ds_read_b64 {P(x[r])}, v9 offset:{2048*r}")
    g.e("s_waitcnt lgkmcnt(0)")
    for r in range(1, 8):
        cmul(g, x[r], x[r], TW1[r-1], T2[0], conj=True)
    y, free = dft8(g, x, T2, +1, KS)
    for j in range(8):
        if j < 2:
            g.e(f"buffer_store_dwordx2 {P(y[j])}, v1, s[8:11], 0 offen offset:{2048*j}")
        else:
            g.e(f"s_movk_i32 s19, {2048*j}")
            g.e(f"buffer_store_dwordx2 {P(y[j])}, v1, s[8:11], s19 offen")
    g.lab("l2_done")
    g.e("s_endpgm")
    return kernel_footer(g, name, 96)

def gen_l3(g):
    name = "rowifft_kernel"
    kernel_header(g, name)
    g.e("s_cmp_ge_u32 s2, 256")
    g.e("s_cbranch_scc1 l3_done")
    g.e("s_load_dwordx2 s[4:5], s[0:1], 80")
    g.e("s_load_dwordx2 s[6:7], s[0:1], 0")
    set_k(g)
    g.e("v_and_b32 v1, 31, v0")
    g.e("v_lshrrev_b32 v2, 5, v0")
    g.e("v_lshrrev_b32 v8, 3, v0")
    g.e("v_and_b32 v14, 7, v0")
    g.e("v_sub_u32 v9, 64, v8")
    g.e("v_cmp_eq_u32 vcc, 0, v8")
    g.e("v_mov_b32 v10, 32")
    g.e("s_nop 1")
    g.e("v_cndmask_b32 v9, v9, v10, vcc")
    g.e("s_lshl_b32 s3, s2, 6")
    g.e("v_lshl_add_u32 v12, v14, 3, s3")
    g.e("v_lshl_add_u32 v13, v8, 14, v12")
    g.e("v_lshl_add_u32 v11, v9, 14, v12")
    for q in range(4):
        g.e(f"s_mov_b32 s{40+q}, 0x{q*64*16384:x}")
    g.e("s_mov_b32 s44, 0x400000")
    g.e("s_waitcnt lgkmcnt(0)")
    srd(g, 8, 6, 0, 2048*1024)
    srd(g, 12, 4, WS_MOD, 3072*4)
    srd(g, 16, 4, WS_XD, 257*16384)
    srd(g, 20, 4, WS_X1, 2048*1024)
    srd(g, 24, 4, WS_H2, 2048*1024)
    XA = [16, 18, 20, 22]; XB = [24, 26, 28, 30]; XN = 32
    for q in range(4):
        g.e(f"buffer_load_dwordx2 {P(XA[q])}, v13, s[16:19], s{40+q} offen")
        g.e(f"buffer_load_dwordx2 {P(XB[q])}, v11, s[16:19], s{40+q} offen")
    g.e(f"buffer_load_dwordx2 {P(XN)}, v12, s[16:19], s44 offen")
    g.e("s_lshl_b32 s3, s2, 13")
    g.e("v_lshl_add_u32 v3, v2, 10, s3")
    g.e("v_lshl_add_u32 v3, v1, 2, v3")
    g.e("v_lshlrev_b32 v4, 3, v1")
    XR = [40+j for j in range(8)]
    SC = [48+2*j for j in range(8)]
    SH = [64+2*j for j in range(8)]
    GA = [128+2*j for j in range(8)]
    TW1 = [80+2*j for j in range(7)]
    TW2 = [94+2*j for j in range(7)]
    TWS = [108+2*j for j in range(4)]
    for j in range(8):
        g.e(f"buffer_load_dword v{XR[j]}, v3, s[8:11], 0 offen offset:{128*j}")
    g.e("s_movk_i32 s45, 4096")
    g.e("s_movk_i32 s46, 8192")
    for j in range(8):
        g.e(f"buffer_load_dwordx2 {P(GA[j])}, v4, s[12:15], s45 offen offset:{256*j}")
        g.e(f"buffer_load_dwordx2 {P(SH[j])}, v4, s[12:15], s45 offen offset:{2048+256*j}")
        g.e(f"buffer_load_dwordx2 {P(SC[j])}, v4, s[12:15], s46 offen offset:{256*j}")
    g.e("v_cvt_f32_u32 v5, v1")
    g.e(f"v_mul_f32 v5, 0x{f2u(1/256):08x}, v5")
    gen_tw(g, TW1, 5, range(1, 8), 6)
    g.e("v_and_b32 v7, 3, v0")
    g.e("v_cvt_f32_u32 v5, v7")
    g.e(f"v_mul_f32 v5, 0x{f2u(1/32):08x}, v5")
    gen_tw(g, TW2, 5, range(1, 8), 6)
    g.e("v_cvt_f32_u32 v5, v8")
    g.e(f"v_mul_f32 v5, 0x{f2u(1/512):08x}, v5")
    for q in range(4):
        g.e(f"v_add_f32 v6, 0x{f2u(q/8):08x}, v5")
        g.e(f"v_cos_f32 v{TWS[q]}, v6")
        g.e(f"v_sin_f32 v{TWS[q]+1}, -v6")
    g.e(f"v_mul_u32_u24 v15, {F_RS}, v14")
    g.e(f"v_add_u32 v15, {LDS_F}, v15")
    g.e("v_lshl_add_u32 v10, v8, 5, v15")
    g.e("v_lshl_add_u32 v15, v9, 5, v15")
    E, D, Tt = 34, 36, 38
    ZA = [144, 146, 148, 150]; ZB = [152, 154, 156, 158]
    g.e("s_waitcnt vmcnt(32)")
    g.e("s_mov_b64 s[50:51], exec")
    g.e("s_andn2_b64 exec, exec, vcc")
    for q in range(4):
        merge_pair(g, XA[q], XB[3-q], P(TWS[q]), E, D, Tt, ZA[q], ZB[3-q])
    g.e("s_and_b64 exec, s[50:51], vcc")
    g.e("s_cbranch_execz l3_nospecial")
    g.e(f"v_mov_b32 v{XA[0]+1}, 0")
    g.e(f"v_mov_b32 v{XN+1}, 0")
    pairs = [(XA[0], XN, 0, ZA[0], 160), (XA[1], XA[3], 64, ZA[1], ZA[3]), (XA[2], XA[2], 128, ZA[2], 160),
             (XB[0], XB[3], 32, ZB[0], ZB[3]), (XB[1], XB[2], 96, ZB[1], ZB[2])]
    for (a, b, k, oa, ob) in pairs:
        const_tw(g, 52, k, 512)
        merge_pair(g, a, b, "s[52:53]", E, D, Tt, oa, ob)
    g.lab("l3_nospecial")
    g.e("s_mov_b64 exec, s[50:51]")
    YA, f0 = dft4(g, ZA, [16, 18], +1)
    YB, f1 = dft4(g, ZB, [20, 22], +1)
    for t0 in range(4):
        g.e(f"ds_write_b64 v10, {P(YA[t0])} offset:{8*t0}")
        g.e(f"ds_write_b64 v15, {P(YB[t0])} offset:{8*t0}")
    g.e("s_waitcnt lgkmcnt(0)")
    g.e("s_barrier")
    g.e("v_bfe_u32 v11, v0, 2, 3")
    g.e(f"v_mul_u32_u24 v13, {F_RS}, v2")
    g.e("v_lshl_add_u32 v13, v11, 5, v13")
    g.e("v_lshl_add_u32 v13, v7, 3, v13")
    g.e(f"v_add_u32 v13, {LDS_F}, v13")
    Z = [16+2*j for j in range(8)]; T = [32, 34, 36, 38]
    for p in range(8):
        g.e(f"ds_read_b64 {P(Z[p])}, v13 offset:{256*p}")
    g.e("v_mul_u32_u24 v9, 2304, v2")
    g.e("v_lshl_add_u32 v10, v1, 3, v9")
    g.e("v_mul_u32_u24 v12, 288, v11")
    g.e("v_add_u32 v12, v12, v9")
    g.e("v_lshl_add_u32 v12, v7, 3, v12")
    g.e("s_waitcnt lgkmcnt(0)")
    for p in range(1, 8):
        cmul(g, Z[p], Z[p], TW2[p-1], T[0], conj=True)
    y, free = dft8(g, Z, T, +1, KS)
    for t1 in range(8):
        g.e(f"ds_write_b64 v12, {P(y[t1])} offset:{32*t1}")
    allr = y + free; x = allr[:8]; T2 = allr[8:]
    for r in range(8):
        g.e(f"ds_read_b64 {P(x[r])}, v10 offset:{288*r}")
    g.e("s_waitcnt lgkmcnt(0)")
    for r in range(1, 8):
        cmul(g, x[r], x[r], TW1[r-1], T2[0], conj=True)
    y, free = dft8(g, x, T2, +1, KS)
    g.e(f"s_mov_b32 s62, 0x{f2u(2.0**-21):08x}")
    g.e(f"s_mov_b32 s63, 0x{f2u(2.0**-21):08x}")
    g.e("s_waitcnt vmcnt(0)")
    tp = 124
    for j in range(8):
        r = y[j]
        g.e(f"v_pk_mul_f32 {P(r)}, {P(r)}, s[62:63]")
        round_pair(g, r, tp)
        g.e(f"v_pk_mul_f32 {P(r)}, {P(r)}, {P(GA[j])}")
        round_pair(g, r, tp)
        g.e(f"v_lshlrev_b32 v{tp+2}, 16, v{XR[j]}")
        g.e(f"v_and_b32 v{tp+3}, 0xffff0000, v{XR[j]}")
        g.e(f"v_pk_add_f32 {P(r)}, {P(r)}, {P(tp+2)}")
        round_pair(g, r, tp)
        g.e(f"buffer_store_dword v{tp}, v3, s[20:23], 0 offen offset:{128*j}")
        g.e("s_nop 0")
    ln_mod(g, y, SC, SH, 120, 121, 122, 123, 124)
    for j in range(8):
        g.e(f"v_cvt_pk_bf16_f32 v{XR[j]}, v{y[j]}, v{y[j]+1}")
        g.e(f"buffer_store_dword v{XR[j]}, v3, s[24:27], 0 offen offset:{128*j}")
    g.lab("l3_done")
    g.e("s_endpgm")
    return kernel_footer(g, name, 168)

def gen_l4(g):
    name = "gemm1_kernel"
    kernel_header(g, name)
    g.e("s_cmp_ge_u32 s2, 256")
    g.e("s_cbranch_scc1 l4_done")
    g.e("s_load_dwordx2 s[4:5], s[0:1], 80")
    g.e("s_and_b32 s20, s2, 15")
    g.e("s_lshr_b32 s21, s2, 4")
    g.e("v_lshrrev_b32 v1, 6, v0")
    g.e("v_and_b32 v2, 63, v0")
    g.e("v_and_b32 v3, 15, v0")
    g.e("v_bfe_u32 v4, v0, 4, 2")
    g.e("s_nop 0")
    g.e("v_readfirstlane_b32 s22, v1")
    g.e("s_waitcnt lgkmcnt(0)")
    srd(g, 8, 4, WS_H2, 2048*1024)
    srd(g, 12, 4, WS_W1P, 16*16*7*1024)
    srd(g, 16, 4, WS_HID, 128*56*1024)
    g.e("s_lshl_b32 s23, s21, 7")
    g.e("s_lshl_b32 s24, s22, 5")
    g.e("s_add_u32 s23, s23, s24")
    g.e("v_add_u32 v5, s23, v3")
    g.e("v_lshlrev_b32 v5, 10, v5")
    g.e("v_lshl_add_u32 v5, v4, 4, v5")
    g.e("v_add_u32 v6, 16384, v5")
    g.e("v_lshlrev_b32 v7, 4, v2")
    g.e("v_add_u32 v8, 57344, v7")
    g.e("s_mul_i32 s25, s20, 114688")
    g.e("s_lshl_b32 s26, s22, 10")
    g.e("s_add_u32 s25, s25, s26")
    g.e("s_mov_b32 s27, s26")
    HB = [[64 + (mf*16+ks)*4 for ks in range(16)] for mf in range(2)]
    ACC = [[(mf*7+nf)*4 for nf in range(7)] for mf in range(2)]
    for ph in range(4):
        for ks in range(4*ph, 4*ph+4):
            g.e(f"buffer_load_dwordx4 v[{HB[0][ks]}:{HB[0][ks]+3}], v5, s[8:11], 0 offen offset:{64*ks}")
            g.e(f"buffer_load_dwordx4 v[{HB[1][ks]}:{HB[1][ks]+3}], v6, s[8:11], 0 offen offset:{64*ks}")
        for i in range(7):
            g.e("s_mov_b32 m0, s27")
            g.e("s_add_u32 s27, s27, 4096")
            g.e("buffer_load_dwordx4 v7, s[12:15], s25 offen lds")
            g.e("s_add_u32 s25, s25, 4096")
    for i in range(56):
        g.e(f"v_accvgpr_write_b32 a{i}, 0")
    WF = [[32 + 4*nf for nf in range(7)], [192 + 4*nf for nf in range(7)]]
    def rd(ks):
        ph = ks // 4
        base = "v7" if ph < 2 else "v8"
        for nf in range(7):
            off = (ks*7+nf)*1024 - (0 if ph < 2 else 57344)
            W = WF[ks % 2]
            g.e(f"ds_read_b128 v[{W[nf]}:{W[nf]+3}], {base} offset:{off}")
    for ph in range(4):
        g.e(f"s_waitcnt vmcnt({15*(3-ph)})")
        g.e("s_barrier")
        rd(4*ph)
        for ks in range(4*ph, 4*ph+4):
            if ks % 4 != 3:
                rd(ks+1)
                g.e("s_waitcnt lgkmcnt(7)")
            else:
                g.e("s_waitcnt lgkmcnt(0)")
            W = WF[ks % 2]
            for nf in range(7):
                for mf in range(2):
                    a = ACC[mf][nf]
                    g.e(f"v_mfma_f32_16x16x32_bf16 a[{a}:{a+3}], v[{W[nf]}:{W[nf]+3}], v[{HB[mf][ks]}:{HB[mf][ks]+3}], a[{a}:{a+3}]")
    g.e("s_nop 15")
    g.e("v_lshrrev_b32 v9, 1, v4")
    g.e("v_lshlrev_b32 v9, 8, v9")
    g.e("v_lshl_add_u32 v9, v3, 4, v9")
    g.e("v_and_b32 v10, 1, v4")
    g.e("v_lshl_add_u32 v9, v10, 3, v9")
    g.e("s_lshl_b32 s28, s21, 3")
    g.e("s_lshl_b32 s29, s22, 1")
    g.e("s_add_u32 s28, s28, s29")
    g.e("s_mul_i32 s28, s28, 57344")
    g.e("s_mul_i32 s30, s20, 7")
    for mf in range(2):
        for nf in range(7):
            a = ACC[mf][nf]
            for i in range(4):
                g.e(f"v_accvgpr_read_b32 v{16+i}, a{a+i}")
            round_pair(g, 16, 20)
            round_pair(g, 18, 20)
            for i in range(4):
                r = 16+i
                g.e(f"v_mul_f32 v21, 0x{f2u(-math.log2(math.e)):08x}, v{r}")
                g.e(f"v_exp_f32 v21, v21")
                g.e("s_nop 0")
                g.e(f"v_add_f32 v21, 1.0, v21")
                g.e(f"v_rcp_f32 v21, v21")
                g.e("s_nop 0")
                g.e(f"v_mul_f32 v{r}, v{r}, v21")
            g.e(f"v_cvt_pk_bf16_f32 v22, v16, v17")
            g.e(f"v_cvt_pk_bf16_f32 v23, v18, v19")
            g.e(f"s_add_u32 s31, s30, {nf}")
            g.e("s_lshr_b32 s32, s31, 1")
            g.e("s_lshl_b32 s32, s32, 10")
            g.e("s_and_b32 s33, s31, 1")
            g.e("s_lshl_b32 s33, s33, 9")
            g.e("s_add_u32 s32, s32, s33")
            g.e("s_add_u32 s32, s32, s28")
            if mf:
                g.e("s_add_u32 s32, s32, 57344")
            g.e("buffer_store_dwordx2 v[22:23], v9, s[16:19], s32 offen")
            g.e("s_nop 1")
    g.lab("l4_done")
    g.e("s_endpgm")
    return kernel_footer(g, name, 224+56, accum=224)

def gen_l5(g):
    name = "gemm2_kernel"
    kernel_header(g, name)
    g.e("s_cmp_ge_u32 s2, 256")
    g.e("s_cbranch_scc1 l5_done")
    g.e("s_load_dwordx2 s[4:5], s[0:1], 80")
    g.e("s_load_dwordx2 s[6:7], s[0:1], 64")
    g.e("s_and_b32 s20, s2, 7")
    g.e("s_lshr_b32 s21, s2, 3")
    g.e("v_lshrrev_b32 v1, 6, v0")
    g.e("v_and_b32 v2, 63, v0")
    g.e("v_and_b32 v3, 15, v0")
    g.e("v_bfe_u32 v4, v0, 4, 2")
    g.e("s_nop 0")
    g.e("v_readfirstlane_b32 s22, v1")
    g.e("s_waitcnt lgkmcnt(0)")
    srd(g, 8, 4, WS_HID, 128*56*1024)
    srd(g, 12, 4, WS_W2P, 8*56*4*1024)
    srd(g, 16, 6, 0, 2048*1024)
    srd(g, 80, 4, WS_X1, 2048*1024)
    srd(g, 84, 4, WS_MOD, 3072*4)
    g.e("v_lshlrev_b32 v7, 4, v2")
    g.e("s_mul_i32 s23, s22, 14")
    g.e("s_mul_i32 s24, s20, 56")
    g.e("s_add_u32 s24, s24, s23")
    g.e("s_lshl_b32 s24, s24, 12")
    for mf in range(4):
        g.e(f"s_lshl_b32 s{32+mf}, s21, 2")
        g.e(f"s_add_u32 s{32+mf}, s{32+mf}, {mf}")
        g.e(f"s_mul_i32 s{32+mf}, s{32+mf}, 56")
        g.e(f"s_add_u32 s{32+mf}, s{32+mf}, s23")
        g.e(f"s_lshl_b32 s{32+mf}, s{32+mf}, 10")
    DEPTH = 6
    def regs(ks):
        b = 16 + (ks % DEPTH)*32
        return [b+4*i for i in range(4)], [b+16+4*i for i in range(4)]
    def issue(ks):
        Wf, Hf = regs(ks)
        for nf in range(4):
            g.e(f"buffer_load_dwordx4 v[{Wf[nf]}:{Wf[nf]+3}], v7, s[12:15], s24 offen offset:{1024*nf}")
        g.e("s_add_u32 s24, s24, 4096")
        for mf in range(4):
            g.e(f"buffer_load_dwordx4 v[{Hf[mf]}:{Hf[mf]+3}], v7, s[8:11], s{32+mf} offen")
            g.e(f"s_add_u32 s{32+mf}, s{32+mf}, 1024")
    for ks in range(DEPTH):
        issue(ks)
    for i in range(64):
        g.e(f"v_accvgpr_write_b32 a{i}, 0")
    for ks in range(14):
        outstanding_after = min(14, ks+DEPTH) - (ks+1)
        g.e(f"s_waitcnt vmcnt({8*outstanding_after})")
        Wf, Hf = regs(ks)
        for mf in range(4):
            for nf in range(4):
                a = (mf*4+nf)*4
                g.e(f"v_mfma_f32_16x16x32_bf16 a[{a}:{a+3}], v[{Wf[nf]}:{Wf[nf]+3}], v[{Hf[mf]}:{Hf[mf]+3}], a[{a}:{a+3}]")
        if ks + DEPTH < 14:
            issue(ks+DEPTH)
    g.e("s_nop 15")
    g.e("s_lshl_b32 s25, s22, 14")
    g.e("v_add_u32 v8, s25, v7")
    for f in range(16):
        for i in range(4):
            g.e(f"v_accvgpr_read_b32 v{16+4*f+i}, a{4*f+i}")
        g.e(f"ds_write_b128 v8, v[{16+4*f}:{19+4*f}] offset:{1024*f}")
    g.e("s_waitcnt lgkmcnt(0)")
    g.e("s_barrier")
    g.e("s_lshl_b32 s25, s22, 12")
    g.e("v_add_u32 v8, s25, v7")
    g.e("v_add_u32 v9, 32768, v8")
    for nf in range(4):
        g.e(f"ds_read_b128 v[{16+4*nf}:{19+4*nf}], v8 offset:{1024*nf}")
        g.e(f"ds_read_b128 v[{32+4*nf}:{35+4*nf}], v8 offset:{16384+1024*nf}")
        g.e(f"ds_read_b128 v[{48+4*nf}:{51+4*nf}], v9 offset:{1024*nf}")
        g.e(f"ds_read_b128 v[{64+4*nf}:{67+4*nf}], v9 offset:{16384+1024*nf}")
    g.e("s_lshl_b32 s26, s21, 6")
    g.e("s_lshl_b32 s27, s22, 4")
    g.e("s_add_u32 s26, s26, s27")
    g.e("v_add_u32 v10, s26, v3")
    g.e("v_lshlrev_b32 v10, 10, v10")
    g.e("s_lshl_b32 s27, s20, 7")
    g.e("v_lshl_add_u32 v11, v4, 3, s27")
    g.e("v_add_u32 v10, v10, v11")
    g.e("v_lshlrev_b32 v11, 1, v11")
    g.e("s_movk_i32 s28, 10240")
    for nf in range(4):
        g.e(f"buffer_load_dwordx2 v[{80+2*nf}:{81+2*nf}], v10, s[80:83], 0 offen offset:{32*nf}")
        g.e(f"buffer_load_dwordx4 v[{96+4*nf}:{99+4*nf}], v11, s[84:87], s28 offen offset:{64*nf}")
    g.e("s_waitcnt lgkmcnt(0)")
    for i in range(16):
        g.e(f"v_add_f32 v{16+i}, v{16+i}, v{32+i}")
        g.e(f"v_add_f32 v{48+i}, v{48+i}, v{64+i}")
    for i in range(16):
        g.e(f"v_add_f32 v{16+i}, v{16+i}, v{48+i}")
    g.e("s_waitcnt vmcnt(0)")
    for nf in range(4):
        for h in range(2):
            r = 16+4*nf+2*h
            round_pair(g, r, 12)
            g.e(f"v_pk_mul_f32 {P(r)}, {P(r)}, {P(96+4*nf+2*h)}")
            round_pair(g, r, 12)
            g.e(f"v_lshlrev_b32 v14, 16, v{80+2*nf+h}")
            g.e(f"v_and_b32 v15, 0xffff0000, v{80+2*nf+h}")
            g.e(f"v_pk_add_f32 {P(r)}, {P(r)}, {P(14)}")
            g.e(f"v_cvt_pk_bf16_f32 v{112+2*nf+h}, v{r}, v{r+1}")
        g.e(f"buffer_store_dwordx2 v[{112+2*nf}:{113+2*nf}], v10, s[16:19], 0 offen offset:{32*nf}")
    g.lab("l5_done")
    g.e("s_endpgm")
    return kernel_footer(g, name, 208+64, accum=208)

def main(out_path, only=None):
    g = G()
    launches = [("prep_kernel", L0_GRID, 8192), ("rowfft_kernel", 256, LDS_F + 8*F_RS), ("colfft_kernel", 257, 16384+8*2304),
                ("rowifft_kernel", 256, LDS_F + 8*F_RS), ("gemm1_kernel", 256, 114688), ("gemm2_kernel", 256, 65536)]
    hdr = open("cdna_kernels/" + NAME + ".s.ref").read().split("\n")
    head = []
    for l in hdr:
        if l.startswith("; Override"):
            break
        head.append(l)
    txt = "\n".join(head) + "\n"
    for (k, grid, lds) in launches:
        txt += f"; @launch kernel={k} grid=({grid},1,1) block=(256,1,1) lds={lds}\n"
    txt += '.amdgcn_target "amdgcn-amd-amdhsa--gfx950"\n.text\n'
    foot = ""
    for fn in (gen_prep, gen_l1, gen_l2, gen_l3, gen_l4, gen_l5):
        foot += fn(g)
    txt += "\n".join(g.L) + "\n"
    txt += '.section .rodata,"a"\n.p2align 6\n' + foot
    open(out_path, "w").write(txt)

if __name__ == "__main__":
    main(sys.argv[1] if len(sys.argv) > 1 else "cdna_kernels/" + NAME + ".s")
```

```python
import sys, math, struct
from gen_multi import (G, P, f2u, cadd, csub, cadd_mi, cadd_pi, cadd_s, cmul, dft8, dft4, gen_tw, srd,
                       allreduce32, round_pair, round1, ln_mod, split_pair, merge_pair, const_tw, set_k, KS, NAME)

WS_MOD  = 0
WS_WAB  = 0x4000
WS_FLAG = 0xC000
WS_WT   = 0x10000
WS_W1P  = WS_WT + 256*8192
WS_W2P  = WS_W1P + 16*16*7*1024
WS_XD   = WS_W2P + 8*56*4*1024
WS_XD   = (WS_XD + 0xFFFF) & ~0xFFFF
WS_ZS   = WS_XD + 256*16384
WS_X1   = WS_ZS + 256*16384
WS_H2   = WS_X1 + 2048*1024
WS_HID  = WS_H2 + 2048*1024
WS_FLAG2 = WS_HID + 128*56*1024
WS_END  = WS_FLAG2 + 256*64

SC = ""
SCS = " sc1"

LDS_X1 = 0
LDS_F  = 8*2304
F_RS   = 2064
LDS_MIR = 16384 + 8*2304
LDS_LID = 131072
FORCE_SLOW = False
PRETOUCH = False

PROFILE = False
WS_PROF = WS_END
_pidx = [0]
def stamp(g):
    if not PROFILE:
        return
    i = _pidx[0]; _pidx[0] += 1
    g.e("s_memrealtime s[88:89]")
    g.e("s_waitcnt lgkmcnt(0)")
    g.e(f"v_writelane_b32 v248, s88, {i}")

def stamp_flush(g):
    if not PROFILE:
        return
    g.e("s_lshl_b32 s88, s2, 10")
    g.e("s_lshl_b32 s89, s95, 7")
    g.e("s_add_u32 s88, s88, s89")
    g.e("v_and_b32 v255, 63, v0")
    g.e("v_lshl_add_u32 v255, v255, 2, s88")
    g.e("s_mov_b64 exec, 0xffffffff")
    g.e("buffer_store_dword v248, v255, s[72:75], 0 offen")

_sid = [0]
def st_dual(g, instr):
    k = _sid[0]; _sid[0] += 1
    g.e("s_cmp_eq_u32 s69, 1")
    g.e(f"s_cbranch_scc1 sdf_{k}")
    g.e(instr + SCS)
    g.e(f"s_branch sde_{k}")
    g.lab(f"sdf_{k}")
    g.e(instr)
    g.lab(f"sde_{k}")

def arrive(g, val, tag):
    local = val >= 4
    g.e("s_waitcnt vmcnt(28) lgkmcnt(0)" if val == 5 else "s_waitcnt vmcnt(0) lgkmcnt(0)")
    if val == 5 and PROFILE:
        g.e("s_memrealtime s[88:89]")
        g.e("s_waitcnt lgkmcnt(0)")
        g.e("v_writelane_b32 v248, s88, 24")
    if val != 1:
        g.e("s_barrier")
    g.e("s_cmp_lg_u32 s95, 0")
    g.e(f"s_cbranch_scc1 arr_skip_{tag}")
    g.e("s_mov_b64 s[92:93], exec")
    g.e("s_mov_b64 exec, 1")
    if val == 1:
        g.e("s_and_b32 s94, s2, 3")
        g.e("s_lshl_b32 s94, s94, 6")
        g.e("v_mov_b32 v255, s94")
        g.e("v_mov_b32 v254, 1")
        g.e(f"buffer_atomic_add v254, v255, s[96:99], 0 offen sc1")
    elif not local:
        g.e("s_lshl_b32 s94, s2, 6")
        g.e("v_mov_b32 v255, s94")
        g.e(f"v_mov_b32 v254, {val}")
        g.e(f"buffer_store_dword v254, v255, s[76:79], 0 offen sc1")
    else:
        g.e("s_lshl_b32 s94, s71, 6")
        g.e("v_mov_b32 v255, s94")
        g.e(f"v_mov_b32 v254, {val}")
        st_dual(g, "buffer_store_dword v254, v255, s[64:67], 0 offen")
    g.e("s_mov_b64 exec, s[92:93]")
    g.lab(f"arr_skip_{tag}")

def wait(g, val, tag):
    local = val >= 4
    g.e("s_cmp_lg_u32 s95, 0")
    g.e(f"s_cbranch_scc1 wait_skip_{tag}")
    g.e("v_and_b32 v253, 63, v0")
    g.e("v_lshlrev_b32 v253, 6, v253")
    if val == 1:
        g.e("s_mov_b64 s[92:93], exec")
        g.e("s_mov_b64 exec, 15")
        g.lab(f"wait_loop_{tag}")
        g.e(f"buffer_load_dword v254, v253, s[96:99], 0 offen sc1")
        g.e("s_waitcnt vmcnt(0)")
        g.e("v_cmp_gt_u32 vcc, 64, v254")
        g.e("s_cmp_eq_u64 vcc, 0")
        g.e(f"s_cbranch_scc0 wait_loop_{tag}")
        g.e("s_mov_b64 exec, s[92:93]")
    else:
        sr = "s[64:67]" if local else "s[76:79]"
        if local:
            g.e("s_cmp_eq_u32 s69, 1")
            g.e(f"s_cbranch_scc0 wait_loop_{tag}")
            g.e("s_lshr_b32 s94, s71, 5")
            g.e("s_lshl_b32 s94, s94, 11")
            g.e("s_mov_b64 s[92:93], exec")
            g.e("s_mov_b64 exec, 0xffffffff")
            g.lab(f"wait_floop_{tag}")
            g.e(f"buffer_load_dword v254, v253, {sr}, s94 offen sc1")
            g.e("s_waitcnt vmcnt(0)")
            g.e(f"v_cmp_gt_u32 vcc, {val}, v254")
            g.e("s_cmp_eq_u64 vcc, 0")
            g.e(f"s_cbranch_scc0 wait_floop_{tag}")
            g.e("s_mov_b64 exec, s[92:93]")
            g.e(f"s_branch wait_skip_{tag}")
        g.lab(f"wait_loop_{tag}")
        for i in range(4):
            g.e(f"s_movk_i32 s94, {4096*i}")
            g.e(f"buffer_load_dword v{249+i}, v253, {sr}, s94 offen sc1")
        g.e("s_waitcnt vmcnt(0)")
        g.e("v_min_u32 v249, v249, v250")
        g.e("v_min_u32 v251, v251, v252")
        g.e("v_min_u32 v249, v249, v251")
        g.e(f"v_cmp_gt_u32 vcc, {val}, v249")
        g.e("s_cmp_eq_u64 vcc, 0")
        g.e(f"s_cbranch_scc0 wait_loop_{tag}")
    g.lab(f"wait_skip_{tag}")
    g.e("s_barrier")
    stamp(g)

def rank_issue(g):
    g.e("s_getreg_b32 s68, hwreg(HW_REG_XCC_ID, 0, 4)")
    g.e("s_and_b32 s68, s68, 7")
    g.e("s_and_b32 s94, s68, 3")
    g.e("s_lshl_b32 s94, s94, 6")
    g.e("s_lshr_b32 s3, s68, 2")
    g.e("s_lshl_b32 s3, s3, 2")
    g.e("s_add_u32 s94, s94, s3")
    g.e("s_add_u32 s94, s94, 8")
    g.e("s_mov_b64 s[92:93], exec")
    g.e("s_mov_b64 exec, 1")
    g.e("v_mov_b32 v255, s94")
    g.e("v_mov_b32 v239, 1")
    g.e("buffer_atomic_add v239, v255, s[96:99], 0 offen sc0 sc1")
    g.e("s_mov_b64 exec, s[92:93]")

def rank_resolve(g):
    g.e("s_cmp_lg_u32 s95, 0")
    g.e("s_cbranch_scc1 rr_skip")
    g.e("v_and_b32 v253, 7, v0")
    g.e("v_and_b32 v254, 3, v253")
    g.e("v_lshlrev_b32 v254, 6, v254")
    g.e("v_lshrrev_b32 v253, 2, v253")
    g.e("v_lshl_add_u32 v254, v253, 2, v254")
    g.e("buffer_load_dword v253, v254, s[96:99], 0 offen offset:8 sc1")
    g.e("s_waitcnt vmcnt(0)")
    g.e("v_cmp_ne_u32 vcc, 32, v253")
    g.e("v_readfirstlane_b32 s3, v239")
    g.e("s_lshl_b32 s94, s68, 5")
    g.e("s_add_u32 s94, s94, s3")
    g.e("s_cmp_eq_u64 vcc, 0")
    g.e("s_cselect_b32 s3, 1, 0")
    if FORCE_SLOW:
        g.e("s_mov_b32 s3, 0")
    g.e("s_cmp_eq_u32 s3, 1")
    g.e("s_cselect_b32 s94, s94, s2")
    g.e("v_mov_b32 v254, s94")
    g.e("v_mov_b32 v255, s3")
    g.e(f"v_mov_b32 v252, {LDS_LID}")
    g.e("ds_write_b64 v252, v[254:255]")
    g.lab("rr_skip")

def lid_read(g):
    g.e(f"v_mov_b32 v252, {LDS_LID}")
    g.e("ds_read_b64 v[254:255], v252")
    g.e("s_waitcnt lgkmcnt(0)")
    g.e("v_readfirstlane_b32 s71, v254")
    g.e("v_readfirstlane_b32 s69, v255")
    g.e("s_nop 3")

def task_mod(g):
    g.e("s_cmp_ge_u32 s2, 48")
    g.e("s_cbranch_scc1 mod_end")
    g.e("s_load_dwordx4 s[8:11], s[0:1], 48")
    g.e("v_lshrrev_b32 v1, 3, v0")
    g.e("v_and_b32 v2, 7, v0")
    g.e("v_lshlrev_b32 v3, 1, v1")
    g.e("s_movk_i32 s24, 6144")
    g.e("v_mul_lo_u32 v4, v1, s24")
    g.e("s_lshl_b32 s25, s2, 7")
    g.e("v_lshl_add_u32 v4, v2, 4, v4")
    g.e("v_add_u32 v4, s25, v4")
    g.e("s_waitcnt lgkmcnt(0)")
    srd(g, 12, 8, 0, 1024)
    srd(g, 16, 10, 0, 512*6144)
    srd(g, 20, 4, WS_MOD, 3072*4)
    for i in range(8):
        g.e(f"buffer_load_ushort v{16+i}, v3, s[12:15], 0 offen offset:{128*i}")
    g.e("s_mov_b32 s26, 0")
    for i in range(8):
        g.e(f"buffer_load_dwordx4 v[{32+4*i}:{35+4*i}], v4, s[16:19], s26 offen")
        g.e(f"s_add_u32 s26, s26, {64*6144}")
    for i in range(8):
        g.e(f"v_mov_b32 v{8+i}, 0")
    g.e("s_waitcnt vmcnt(8)")
    for i in range(8):
        r = 16+i
        g.e(f"v_lshlrev_b32 v{r}, 16, v{r}")
        g.e(f"v_mul_f32 v{24+i}, 0x{f2u(-math.log2(math.e)):08x}, v{r}")
    for i in range(8):
        g.e(f"v_exp_f32 v{24+i}, v{24+i}")
    for i in range(8):
        g.e(f"v_add_f32 v{24+i}, 1.0, v{24+i}")
    for i in range(8):
        g.e(f"v_rcp_f32 v{24+i}, v{24+i}")
    for i in range(8):
        g.e(f"v_mul_f32 v{16+i}, v{16+i}, v{24+i}")
    for i in range(8):
        round1(g, 16+i)
    for i in range(8):
        g.e(f"s_waitcnt vmcnt({7-i})")
        g.e(f"v_mov_b32 v7, v{16+i}")
        g.e(f"v_mov_b32 v6, v{16+i}")
        for q in range(4):
            w = 32+4*i+q
            g.e(f"v_lshlrev_b32 v4, 16, v{w}")
            g.e(f"v_and_b32 v5, 0xffff0000, v{w}")
            g.e(f"v_pk_fma_f32 {P(8+2*q)}, {P(4)}, {P(6)}, {P(8+2*q)}")
    g.e("v_lshlrev_b32 v5, 8, v1")
    g.e("v_lshl_add_u32 v5, v2, 5, v5")
    g.e("ds_write_b128 v5, v[8:11]")
    g.e("ds_write_b128 v5, v[12:15] offset:16")
    g.e("s_waitcnt lgkmcnt(0)")
    g.e("s_barrier")
    g.e("s_cmp_lg_u32 s95, 0")
    g.e("s_cbranch_scc1 mod_end")
    g.e("v_lshlrev_b32 v5, 2, v0")
    for i in range(64):
        g.e(f"ds_read_b32 v{32+i}, v5 offset:{256*i}")
    g.e("s_waitcnt lgkmcnt(0)")
    for st in (32, 16, 8, 4, 2):
        for i in range(0, st, 2):
            g.e(f"v_pk_add_f32 {P(32+i)}, {P(32+i)}, {P(32+i+st)}")
    g.e("v_add_f32 v32, v32, v33")
    round1(g, 32)
    g.e("s_lshr_b32 s26, s2, 3")
    g.e("s_cmp_eq_u32 s26, 1")
    g.e("s_cselect_b32 s27, 1, 0")
    g.e("s_cmp_eq_u32 s26, 4")
    g.e("s_cselect_b32 s27, 1, s27")
    g.e("s_cmp_eq_u32 s27, 0")
    g.e("s_cbranch_scc1 mod_st")
    g.e("v_add_f32 v32, 1.0, v32")
    round1(g, 32)
    g.lab("mod_st")
    g.e("s_lshl_b32 s26, s2, 8")
    g.e("v_add_u32 v5, s26, v5")
    g.e(f"buffer_store_dword v32, v5, s[20:23], 0 offen{SCS}")
    g.lab("mod_end")

def task_w1(g):
    g.e("s_load_dwordx2 s[8:9], s[0:1], 32")
    g.e("s_waitcnt lgkmcnt(0)")
    srd(g, 12, 8, 0, 512*3584)
    srd(g, 16, 4, WS_W1P, 16*16*7*1024)
    g.e("s_and_b32 s25, s2, 15")
    g.e("s_lshr_b32 s26, s2, 4")
    g.e("s_movk_i32 s27, 224")
    g.e("v_cmp_gt_u32 vcc, s27, v0")
    g.e("s_and_saveexec_b64 s[28:29], vcc")
    g.e("s_cbranch_execz w1_end")
    g.e("v_and_b32 v1, 7, v0")
    g.e("v_bfe_u32 v2, v0, 3, 2")
    g.e("v_lshrrev_b32 v3, 5, v0")
    g.e("s_lshl_b32 s27, s26, 5")
    g.e("v_lshl_add_u32 v4, v2, 3, s27")
    g.e("s_movk_i32 s30, 3584")
    g.e("v_mul_lo_u32 v4, v4, s30")
    g.e("s_mul_i32 s31, s25, 224")
    g.e("v_lshl_add_u32 v5, v3, 5, s31")
    g.e("v_lshl_add_u32 v5, v1, 2, v5")
    g.e("v_add_u32 v4, v4, v5")
    g.e("s_mov_b32 s32, 0")
    for e in range(8):
        g.e(f"buffer_load_dword v{8+e}, v4, s[12:15], s32 offen")
        g.e(f"s_add_u32 s32, s32, 3584")
    g.e("s_lshl_b32 s33, s25, 4")
    g.e("s_add_u32 s33, s33, s26")
    g.e("s_mul_i32 s33, s33, 7168")
    g.e("v_lshl_add_u32 v6, v3, 10, s33")
    g.e("v_lshl_add_u32 v6, v2, 8, v6")
    g.e("v_lshl_add_u32 v6, v1, 5, v6")
    g.e("s_mov_b32 s34, 0x05040100")
    g.e("s_mov_b32 s35, 0x07060302")
    g.e("s_waitcnt vmcnt(0)")
    for q in range(4):
        g.e(f"v_perm_b32 v{16+q}, v{9+2*q}, v{8+2*q}, s34")
        g.e(f"v_perm_b32 v{20+q}, v{9+2*q}, v{8+2*q}, s35")
    g.e(f"buffer_store_dwordx4 v[16:19], v6, s[16:19], 0 offen{SCS}")
    g.e(f"buffer_store_dwordx4 v[20:23], v6, s[16:19], 0 offen offset:16{SCS}")
    g.lab("w1_end")
    g.e("s_mov_b64 exec, s[28:29]")

def task_w2(g):
    g.e("s_cmp_ge_u32 s2, 224")
    g.e("s_cbranch_scc1 w2_end")
    g.e("s_load_dwordx2 s[8:9], s[0:1], 40")
    g.e("s_waitcnt lgkmcnt(0)")
    srd(g, 12, 8, 0, 1792*1024)
    srd(g, 16, 4, WS_W2P, 8*56*4*1024)
    g.e("s_and_b32 s25, s2, 7")
    g.e("s_lshr_b32 s26, s2, 3")
    g.e("v_and_b32 v1, 7, v0")
    g.e("v_bfe_u32 v2, v0, 3, 2")
    g.e("v_bfe_u32 v3, v0, 5, 2")
    g.e("v_lshrrev_b32 v7, 7, v0")
    g.e("s_lshl_b32 s27, s26, 1")
    g.e("v_add_u32 v7, s27, v7")
    g.e("v_lshlrev_b32 v4, 5, v7")
    g.e("v_lshl_add_u32 v4, v2, 3, v4")
    g.e("v_lshlrev_b32 v4, 10, v4")
    g.e("s_lshl_b32 s31, s25, 7")
    g.e("v_lshl_add_u32 v5, v3, 5, s31")
    g.e("v_lshl_add_u32 v5, v1, 2, v5")
    g.e("v_add_u32 v4, v4, v5")
    g.e("s_movk_i32 s36, 4096")
    for e in range(8):
        g.e(f"buffer_load_dword v{8+e}, v4, s[12:15], 0 offen offset:{1024*e}" if e < 4 else
            f"buffer_load_dword v{8+e}, v4, s[12:15], s36 offen offset:{1024*(e-4)}")
    g.e("s_mul_i32 s33, s25, 56")
    g.e("v_add_u32 v6, s33, v7")
    g.e("v_lshlrev_b32 v6, 12, v6")
    g.e("v_lshl_add_u32 v6, v3, 10, v6")
    g.e("v_lshl_add_u32 v6, v2, 8, v6")
    g.e("v_lshl_add_u32 v6, v1, 5, v6")
    g.e("s_mov_b32 s34, 0x05040100")
    g.e("s_mov_b32 s35, 0x07060302")
    g.e("s_waitcnt vmcnt(0)")
    for q in range(4):
        g.e(f"v_perm_b32 v{16+q}, v{9+2*q}, v{8+2*q}, s34")
        g.e(f"v_perm_b32 v{20+q}, v{9+2*q}, v{8+2*q}, s35")
    g.e(f"buffer_store_dwordx4 v[16:19], v6, s[16:19], 0 offen{SCS}")
    g.e(f"buffer_store_dwordx4 v[20:23], v6, s[16:19], 0 offen offset:16{SCS}")
    g.lab("w2_end")

def task_wt(g, idx_sreg, tag):
    g.e("s_load_dwordx4 s[8:11], s[0:1], 8")
    g.e("s_waitcnt lgkmcnt(0)")
    srd(g, 12, 8, 0, 2048*514)
    srd(g, 16, 10, 0, 2048*514)
    srd(g, 20, 4, WS_WT, 256*8192)
    g.e(f"s_and_b32 s25, s{idx_sreg}, 7")
    g.e(f"s_lshr_b32 s26, s{idx_sreg}, 3")
    g.e("s_and_b32 s27, s26, 7")
    g.e("s_lshr_b32 s26, s26, 3")
    g.e("v_and_b32 v1, 63, v0")
    g.e("s_lshl_b32 s28, s26, 6")
    g.e("v_add_u32 v1, s28, v1")
    g.e("v_lshrrev_b32 v2, 6, v0")
    g.e("s_lshr_b32 s29, s25, 1")
    g.e("s_lshl_b32 s29, s29, 9")
    g.e("s_and_b32 s32, s25, 1")
    g.e("s_lshl_b32 s32, s32, 6")
    g.e("s_add_u32 s29, s29, s32")
    g.e("s_add_u32 s29, s29, s27")
    g.e("v_lshl_add_u32 v3, v2, 3, s29")
    g.e("s_movk_i32 s33, 514")
    g.e("v_mul_lo_u32 v3, v3, s33")
    g.e("v_lshl_add_u32 v3, v1, 1, v3")
    for pp in range(2):
        for c2 in range(4):
            off = (32*pp + 128*c2)*514
            g.e(f"s_mov_b32 s34, {off}")
            g.e(f"buffer_load_ushort v{8+8*pp+c2}, v3, s[12:15], s34 offen")
            g.e(f"buffer_load_ushort v{12+8*pp+c2}, v3, s[16:19], s34 offen")
    g.e("v_lshlrev_b32 v4, 13, v1")
    g.e("s_lshl_b32 s35, s25, 10")
    g.e("s_lshl_b32 s36, s27, 7")
    g.e("s_add_u32 s35, s35, s36")
    g.e("v_add_u32 v4, s35, v4")
    g.e("v_lshl_add_u32 v4, v2, 4, v4")
    g.e("s_waitcnt vmcnt(0)")
    for pp in range(2):
        for c2 in range(4):
            g.e(f"v_lshl_or_b32 v{8+8*pp+c2}, v{12+8*pp+c2}, 16, v{8+8*pp+c2}")
    g.e(f"buffer_store_dwordx4 v[8:11], v4, s[20:23], 0 offen{SCS}")
    g.e(f"buffer_store_dwordx4 v[16:19], v4, s[20:23], 0 offen offset:64{SCS}")

def task_wab(g):
    g.e("s_cmp_lt_u32 s2, 248")
    g.e("s_cbranch_scc1 wab_end")
    g.e("s_load_dwordx4 s[8:11], s[0:1], 8")
    g.e("s_waitcnt lgkmcnt(0)")
    srd(g, 12, 8, 0, 2048*514)
    srd(g, 16, 10, 0, 2048*514)
    srd(g, 20, 4, WS_WAB, 2048*16)
    g.e("s_sub_u32 s24, s2, 248")
    g.e("s_lshr_b32 s25, s24, 1")
    g.e("s_lshl_b32 s25, s25, 9")
    g.e("s_and_b32 s26, s24, 1")
    g.e("s_lshl_b32 s26, s26, 6")
    g.e("s_add_u32 s25, s25, s26")
    g.e("v_lshrrev_b32 v1, 5, v0")
    g.e("v_bfe_u32 v2, v0, 2, 3")
    g.e("v_and_b32 v3, 3, v0")
    g.e("v_lshl_add_u32 v4, v2, 3, v1")
    g.e("v_lshl_add_u32 v4, v3, 7, v4")
    g.e("s_movk_i32 s33, 514")
    g.e("v_lshlrev_b32 v9, 4, v0")
    g.e("v_add_u32 v5, s25, v4")
    g.e("v_sub_u32 v6, 2048, v5")
    g.e("v_and_b32 v6, 2047, v6")
    g.e("v_mul_lo_u32 v7, v5, s33")
    g.e("v_mul_lo_u32 v8, v6, s33")
    g.e("buffer_load_ushort v16, v7, s[12:15], 0 offen")
    g.e("buffer_load_ushort v17, v7, s[16:19], 0 offen")
    g.e("buffer_load_ushort v18, v7, s[12:15], 0 offen offset:512")
    g.e("buffer_load_ushort v19, v7, s[16:19], 0 offen offset:512")
    g.e("buffer_load_ushort v20, v8, s[12:15], 0 offen")
    g.e("buffer_load_ushort v21, v8, s[16:19], 0 offen")
    g.e("buffer_load_ushort v22, v8, s[12:15], 0 offen offset:512")
    g.e("buffer_load_ushort v23, v8, s[16:19], 0 offen offset:512")
    g.e("s_lshl_b32 s37, s24, 12")
    g.e("s_waitcnt vmcnt(0)")
    for r in range(16, 24):
        g.e(f"v_lshlrev_b32 v{r}, 16, v{r}")
    g.e("v_add_f32 v24, v16, v20")
    g.e("v_sub_f32 v25, v17, v21")
    g.e("v_add_f32 v26, v18, v22")
    g.e("v_sub_f32 v27, v19, v23")
    g.e("v_add_f32 v28, v24, v26")
    g.e("v_add_f32 v29, v25, v27")
    g.e("v_sub_f32 v30, v24, v26")
    g.e("v_sub_f32 v31, v25, v27")
    for r in range(28, 32):
        g.e(f"v_mul_f32 v{r}, 0.25, v{r}")
    g.e(f"buffer_store_dwordx4 v[28:31], v9, s[20:23], s37 offen{SCS}")
    g.lab("wab_end")

XR1 = [240+j for j in range(8)]
def l1_prefetch(g):
    g.e("s_load_dwordx2 s[6:7], s[0:1], 0")
    g.e("v_and_b32 v1, 31, v0")
    g.e("v_lshrrev_b32 v2, 5, v0")
    g.e("s_lshl_b32 s3, s2, 13")
    g.e("v_lshl_add_u32 v3, v2, 10, s3")
    g.e("v_lshl_add_u32 v3, v1, 2, v3")
    g.e("s_waitcnt lgkmcnt(0)")
    srd(g, 8, 6, 0, 2048*1024)
    for j in range(8):
        g.e(f"buffer_load_dword v{XR1[j]}, v3, s[8:11], 0 offen offset:{128*j}")

def phase_l1(g):
    set_k(g)
    g.e("v_and_b32 v1, 31, v0")
    g.e("v_lshrrev_b32 v2, 5, v0")
    g.e("v_lshlrev_b32 v4, 3, v1")
    srd(g, 12, 4, WS_MOD, 3072*4)
    srd(g, 16, 4, WS_XD, 256*16384)
    Z = [16+2*j for j in range(8)]
    T = [32, 34, 36, 38]
    SCm = [48+2*j for j in range(8)]
    SH = [64+2*j for j in range(8)]
    TW1 = [80+2*j for j in range(7)]
    TW2 = [94+2*j for j in range(7)]
    TWS = [108+2*j for j in range(4)]
    g.e("v_cvt_f32_u32 v5, v1")
    g.e(f"v_mul_f32 v5, 0x{f2u(1/256):08x}, v5")
    gen_tw(g, TW1, 5, range(1, 8), 6)
    g.e("v_and_b32 v7, 3, v0")
    g.e("v_cvt_f32_u32 v5, v7")
    g.e(f"v_mul_f32 v5, 0x{f2u(1/32):08x}, v5")
    gen_tw(g, TW2, 5, range(1, 8), 6)
    g.e("v_lshrrev_b32 v8, 3, v0")
    g.e("v_cvt_f32_u32 v5, v8")
    g.e(f"v_mul_f32 v5, 0x{f2u(1/512):08x}, v5")
    for q in range(4):
        g.e(f"v_add_f32 v6, 0x{f2u(q/8):08x}, v5")
        g.e(f"v_cos_f32 v{TWS[q]}, v6")
        g.e(f"v_sin_f32 v{TWS[q]+1}, -v6")
    g.e("v_mul_u32_u24 v9, 2304, v2")
    g.e("v_lshl_add_u32 v10, v1, 3, v9")
    g.e("v_bfe_u32 v11, v0, 2, 3")
    g.e("v_mul_u32_u24 v12, 288, v11")
    g.e("v_add_u32 v12, v12, v9")
    g.e("v_lshl_add_u32 v12, v7, 3, v12")
    g.e(f"v_mul_u32_u24 v13, {F_RS}, v2")
    g.e("v_lshl_add_u32 v13, v11, 5, v13")
    g.e("v_lshl_add_u32 v13, v7, 3, v13")
    g.e(f"v_add_u32 v13, {LDS_F}, v13")
    g.e("s_waitcnt vmcnt(0)")
    for j in range(8):
        g.e(f"v_lshlrev_b32 v{Z[j]}, 16, v{XR1[j]}")
        g.e(f"v_and_b32 v{Z[j]+1}, 0xffff0000, v{XR1[j]}")
    wait(g, 1, "a")
    for j in range(8):
        g.e(f"buffer_load_dwordx2 {P(SH[j])}, v4, s[12:15], 0 offen offset:{256*j}{SC}")
        g.e(f"buffer_load_dwordx2 {P(SCm[j])}, v4, s[12:15], 0 offen offset:{2048+256*j}{SC}")
    g.e("s_waitcnt vmcnt(0)")
    ln_mod(g, Z, SCm, SH, 120, 121, 122, 123, 124)
    y, free = dft8(g, Z, T, -1, KS)
    for r in range(1, 8):
        cmul(g, y[r], y[r], TW1[r-1], free[0])
    for r in range(8):
        g.e(f"ds_write_b64 v10, {P(y[r])} offset:{288*r}")
    allr = y + free
    x = allr[:8]; T2 = allr[8:]
    for t1 in range(8):
        g.e(f"ds_read_b64 {P(x[t1])}, v12 offset:{32*t1}")
    g.e("s_waitcnt lgkmcnt(0)")
    y, free = dft8(g, x, T2, -1, KS)
    for p in range(1, 8):
        cmul(g, y[p], y[p], TW2[p-1], free[0])
    for p in range(8):
        g.e(f"ds_write_b64 v13, {P(y[p])} offset:{256*p}")
    g.e("s_waitcnt lgkmcnt(0)")
    g.e("s_barrier")
    g.e("v_and_b32 v14, 7, v0")
    g.e(f"v_mul_u32_u24 v15, {F_RS}, v14")
    g.e(f"v_add_u32 v15, {LDS_F}, v15")
    g.e("v_sub_u32 v9, 64, v8")
    g.e("v_cmp_eq_u32 vcc, 0, v8")
    g.e("v_mov_b32 v10, 32")
    g.e("s_nop 1")
    g.e("v_cndmask_b32 v9, v9, v10, vcc")
    g.e("v_lshl_add_u32 v10, v8, 5, v15")
    g.e("v_lshl_add_u32 v11, v9, 5, v15")
    A = [16, 18, 20, 22]; B = [24, 26, 28, 30]
    g.e("ds_read_b128 v[16:19], v10")
    g.e("ds_read_b128 v[20:23], v10 offset:16")
    g.e("ds_read_b128 v[24:27], v11")
    g.e("ds_read_b128 v[28:31], v11 offset:16")
    g.e("s_lshl_b32 s3, s2, 6")
    g.e("v_lshl_add_u32 v12, v14, 3, s3")
    g.e("v_lshl_add_u32 v13, v8, 14, v12")
    g.e("v_lshl_add_u32 v14, v9, 14, v12")
    for q in range(4):
        g.e(f"s_mov_b32 s{40+q}, 0x{q*64*16384:x}")
    g.e("s_waitcnt lgkmcnt(0)")
    ZA, fr = dft4(g, A, [32, 34], -1)
    ZB, fr2 = dft4(g, B, [36, 38], -1)
    E, D, Tt = 40, 42, 44
    g.e("s_mov_b64 s[50:51], exec")
    g.e("s_andn2_b64 exec, exec, vcc")
    for q in range(4):
        oa, ob = 46+4*q, 48+4*q
        split_pair(g, ZA[q], ZB[3-q], P(TWS[q]), E, D, Tt, oa, ob)
        g.e(f"buffer_store_dwordx2 {P(oa)}, v13, s[16:19], s{40+q} offen{SCS}")
        g.e(f"buffer_store_dwordx2 {P(ob)}, v14, s[16:19], s{40+3-q} offen{SCS}")
    g.e("s_and_b64 exec, s[50:51], vcc")
    g.e("s_cbranch_execz l1_nospecial")
    pairs = [(ZA[0], ZA[0], 0, 256), (ZA[1], ZA[3], 64, 192), (ZA[2], ZA[2], 128, None),
             (ZB[0], ZB[3], 32, 224), (ZB[1], ZB[2], 96, 160)]
    for n, (a, b, k, k2) in enumerate(pairs):
        oa, ob = 64+4*n, 66+4*n
        const_tw(g, 52, k, 512)
        split_pair(g, a, b, "s[52:53]", E, D, Tt, oa, ob)
        if k == 0:
            g.e(f"v_mov_b32 v{oa+1}, v{ob}")
            g.e(f"buffer_store_dwordx2 {P(oa)}, v12, s[16:19], 0 offen{SCS}")
            continue
        g.e(f"s_mov_b32 s54, 0x{k*16384:x}")
        g.e(f"buffer_store_dwordx2 {P(oa)}, v12, s[16:19], s54 offen{SCS}")
        if k2 is not None:
            g.e(f"s_mov_b32 s54, 0x{k2*16384:x}")
            g.e(f"buffer_store_dwordx2 {P(ob)}, v12, s[16:19], s54 offen{SCS}")
    g.lab("l1_nospecial")
    g.e("s_mov_b64 exec, s[50:51]")

def phase_l2(g):
    set_k(g)
    g.e("s_lshl_b32 s3, s2, 14")
    g.e("v_lshl_add_u32 v1, v0, 3, s3")
    g.e("s_lshl_b32 s3, s2, 13")
    g.e("v_lshl_add_u32 v2, v0, 2, s3")
    srd(g, 8, 4, WS_XD, 256*16384)
    srd(g, 12, 4, WS_WT, 256*8192)
    srd(g, 20, 4, WS_ZS, 256*16384)
    srd(g, 24, 4, WS_WAB, 2048*16)
    Z = [16+2*j for j in range(8)]
    T = [32, 34, 36, 38]
    WR = [40+j for j in range(8)]
    TW1 = [48+2*j for j in range(7)]
    TW2 = [62+2*j for j in range(7)]
    TW3 = [76+2*j for j in range(7)]
    g.e("s_movk_i32 s17, 4096")
    g.e("v_cvt_f32_u32 v5, v0")
    g.e(f"v_mul_f32 v5, 0x{f2u(1/2048):08x}, v5")
    gen_tw(g, TW1, 5, range(1, 8), 6)
    g.e("v_and_b32 v7, 31, v0")
    g.e("v_cvt_f32_u32 v5, v7")
    g.e(f"v_mul_f32 v5, 0x{f2u(1/256):08x}, v5")
    gen_tw(g, TW2, 5, range(1, 8), 6)
    g.e("v_and_b32 v8, 3, v0")
    g.e("v_cvt_f32_u32 v5, v8")
    g.e(f"v_mul_f32 v5, 0x{f2u(1/32):08x}, v5")
    gen_tw(g, TW3, 5, range(1, 8), 6)
    g.e("v_lshlrev_b32 v9, 3, v0")
    g.e("v_lshrrev_b32 v10, 5, v0")
    g.e("v_lshlrev_b32 v11, 11, v10")
    g.e("v_lshl_add_u32 v11, v7, 3, v11")
    g.e("v_mul_u32_u24 v12, 2304, v10")
    g.e("v_add_u32 v12, 16384, v12")
    g.e("v_lshl_add_u32 v13, v7, 3, v12")
    g.e("v_bfe_u32 v14, v0, 2, 3")
    g.e("v_mul_u32_u24 v14, 288, v14")
    g.e("v_add_u32 v14, v14, v12")
    g.e("v_lshl_add_u32 v15, v8, 6, v14")
    g.e("v_lshl_add_u32 v14, v8, 3, v14")
    wait(g, 2, "b")
    rank_resolve(g)
    for j in range(8):
        if j < 2:
            g.e(f"buffer_load_dwordx2 {P(Z[j])}, v1, s[8:11], 0 offen offset:{2048*j}{SC}")
        else:
            g.e(f"s_movk_i32 s19, {2048*j}")
            g.e(f"buffer_load_dwordx2 {P(Z[j])}, v1, s[8:11], s19 offen{SC}")
    for i in range(8):
        if i < 4:
            g.e(f"buffer_load_dword v{WR[i]}, v2, s[12:15], 0 offen offset:{1024*i}{SC}")
        else:
            g.e(f"buffer_load_dword v{WR[i]}, v2, s[12:15], s17 offen offset:{1024*(i-4)}{SC}")
    g.e("s_cmp_lg_u32 s2, 0")
    g.e("s_cbranch_scc1 l2_nowab")
    g.e("v_lshlrev_b32 v3, 4, v0")
    for i in range(8):
        g.e(f"s_movk_i32 s19, {4096*i}")
        g.e(f"buffer_load_dwordx4 v[{128+4*i}:{131+4*i}], v3, s[24:27], s19 offen{SC}")
    g.e("s_waitcnt vmcnt(16)")
    g.e("s_branch l2_go")
    g.lab("l2_nowab")
    g.e("s_waitcnt vmcnt(8)")
    g.lab("l2_go")
    y, free = dft8(g, Z, T, -1, KS)
    for r in range(1, 8):
        cmul(g, y[r], y[r], TW1[r-1], free[0])
    for r in range(8):
        g.e(f"ds_write_b64 v9, {P(y[r])} offset:{2048*r}")
    g.e("s_waitcnt lgkmcnt(0)")
    g.e("s_barrier")
    allr = y + free; x = allr[:8]; T2 = allr[8:]
    for t1 in range(8):
        g.e(f"ds_read_b64 {P(x[t1])}, v11 offset:{256*t1}")
    g.e("s_waitcnt lgkmcnt(0)")
    y, free = dft8(g, x, T2, -1, KS)
    for p in range(1, 8):
        cmul(g, y[p], y[p], TW2[p-1], free[0])
    for p in range(8):
        g.e(f"ds_write_b64 v13, {P(y[p])} offset:{288*p}")
    allr = y + free; x = allr[:8]; T2 = allr[8:]
    for b in range(8):
        g.e(f"ds_read_b64 {P(x[b])}, v14 offset:{32*b}")
    g.e("s_waitcnt lgkmcnt(0)")
    y, free = dft8(g, x, T2, -1, KS)
    for c in range(1, 8):
        cmul(g, y[c], y[c], TW3[c-1], free[0])
    for c in range(8):
        g.e(f"ds_write_b64 v14, {P(y[c])} offset:{32*c}")
    g.e("s_waitcnt lgkmcnt(0)")
    for i in range(4):
        g.e(f"ds_read_b128 v[{16+4*i}:{19+4*i}], v15 offset:{16*i}")
    g.e("s_waitcnt lgkmcnt(0)")
    Y0, f0 = dft4(g, [16, 18, 20, 22], [32, 34], -1)
    Y1, f1 = dft4(g, [24, 26, 28, 30], [36, 38], -1)
    g.e("s_waitcnt vmcnt(0)")
    tw = 90; tt = 92
    g.e("s_cmp_eq_u32 s2, 0")
    g.e("s_cbranch_scc1 l2_col0")
    for q in range(4):
        for e, Y in ((0, Y0), (1, Y1)):
            wr = WR[q*2+e]
            g.e(f"v_lshlrev_b32 v{tw}, 16, v{wr}")
            g.e(f"v_and_b32 v{tw+1}, 0xffff0000, v{wr}")
            cmul(g, Y[q], Y[q], tw, tt)
    g.e("s_branch l2_inv")
    g.lab("l2_col0")
    g.e("v_lshrrev_b32 v3, 5, v0")
    g.e("v_bfe_u32 v4, v0, 2, 3")
    g.e("v_lshl_add_u32 v3, v4, 3, v3")
    g.e("v_lshl_add_u32 v3, v8, 7, v3")
    g.e(f"v_lshlrev_b32 v4, 3, v3")
    g.e(f"v_add_u32 v4, {LDS_MIR}, v4")
    for q in range(4):
        for e, Y in ((0, Y0), (1, Y1)):
            g.e(f"ds_write_b64 v4, {P(Y[q])} offset:{(512*q+64*e)*8}")
    g.e("s_waitcnt lgkmcnt(0)")
    g.e("s_barrier")
    for q in range(4):
        for e, Y in ((0, Y0), (1, Y1)):
            i = q*2+e
            g.e(f"v_add_u32 v5, {512*q+64*e}, v3")
            g.e("v_sub_u32 v5, 2048, v5")
            g.e("v_and_b32 v5, 2047, v5")
            g.e("v_lshlrev_b32 v5, 3, v5")
            g.e(f"v_add_u32 v5, {LDS_MIR}, v5")
            g.e(f"ds_read_b64 {P(96+2*i)}, v5")
    g.e("s_waitcnt lgkmcnt(0)")
    for q in range(4):
        for e, Y in ((0, Y0), (1, Y1)):
            i = q*2+e
            wa, wb = 128+4*i, 130+4*i
            m = 96+2*i
            cmul(g, Y[q], Y[q], wa, tt)
            g.e(f"v_pk_mul_f32 {P(tt)}, {P(m)}, {P(wb)} op_sel:[0,0] op_sel_hi:[1,0] neg_hi:[1,0]")
            g.e(f"v_pk_fma_f32 {P(tt)}, {P(m)}, {P(wb)}, {P(tt)} op_sel:[1,1,0] op_sel_hi:[0,1,1]")
            cadd(g, Y[q], Y[q], tt)
    g.lab("l2_inv")
    A0, f0 = dft4(g, Y0, f0, +1)
    A1, f1 = dft4(g, Y1, f1, +1)
    for a in range(4):
        g.e(f"ds_write_b64 v15, {P(A0[a])} offset:{8*a}")
        g.e(f"ds_write_b64 v15, {P(A1[a])} offset:{32+8*a}")
    x = Z; T2 = T
    for c in range(8):
        g.e(f"ds_read_b64 {P(x[c])}, v14 offset:{32*c}")
    g.e("s_waitcnt lgkmcnt(0)")
    for c in range(1, 8):
        cmul(g, x[c], x[c], TW3[c-1], T2[0], conj=True)
    y, free = dft8(g, x, T2, +1, KS)
    for b in range(8):
        g.e(f"ds_write_b64 v14, {P(y[b])} offset:{32*b}")
    allr = y + free; x = allr[:8]; T2 = allr[8:]
    for p in range(8):
        g.e(f"ds_read_b64 {P(x[p])}, v13 offset:{288*p}")
    g.e("s_waitcnt lgkmcnt(0)")
    for p in range(1, 8):
        cmul(g, x[p], x[p], TW2[p-1], T2[0], conj=True)
    y, free = dft8(g, x, T2, +1, KS)
    for t1 in range(8):
        g.e(f"ds_write_b64 v11, {P(y[t1])} offset:{256*t1}")
    g.e("s_waitcnt lgkmcnt(0)")
    g.e("s_barrier")
    allr = y + free; x = allr[:8]; T2 = allr[8:]
    for r in range(8):
        g.e(f"ds_read_b64 {P(x[r])}, v9 offset:{2048*r}")
    g.e("s_waitcnt lgkmcnt(0)")
    for r in range(1, 8):
        cmul(g, x[r], x[r], TW1[r-1], T2[0], conj=True)
    y, free = dft8(g, x, T2, +1, KS)
    for j in range(8):
        if j < 2:
            g.e(f"buffer_store_dwordx2 {P(y[j])}, v1, s[20:23], 0 offen offset:{2048*j}{SCS}")
        else:
            g.e(f"s_movk_i32 s19, {2048*j}")
            g.e(f"buffer_store_dwordx2 {P(y[j])}, v1, s[20:23], s19 offen{SCS}")

def phase_l3(g):
    lid_read(g)
    set_k(g)
    g.e("s_load_dwordx2 s[6:7], s[0:1], 0")
    g.e("v_and_b32 v1, 31, v0")
    g.e("v_lshrrev_b32 v2, 5, v0")
    g.e("v_lshrrev_b32 v8, 3, v0")
    g.e("v_and_b32 v14, 7, v0")
    g.e("v_sub_u32 v9, 64, v8")
    g.e("v_cmp_eq_u32 vcc, 0, v8")
    g.e("v_mov_b32 v10, 32")
    g.e("s_nop 1")
    g.e("v_cndmask_b32 v9, v9, v10, vcc")
    g.e("s_mov_b64 s[56:57], vcc")
    g.e("s_lshl_b32 s3, s71, 6")
    g.e("v_lshl_add_u32 v12, v14, 3, s3")
    g.e("v_lshl_add_u32 v13, v8, 14, v12")
    g.e("v_lshl_add_u32 v11, v9, 14, v12")
    for q in range(4):
        g.e(f"s_mov_b32 s{40+q}, 0x{q*64*16384:x}")
    g.e("s_waitcnt lgkmcnt(0)")
    srd(g, 8, 6, 0, 2048*1024)
    srd(g, 12, 4, WS_MOD, 3072*4)
    srd(g, 16, 4, WS_ZS, 256*16384)
    srd(g, 20, 4, WS_X1, 2048*1024)
    srd(g, 24, 4, WS_H2, 2048*1024)
    XA = [16, 18, 20, 22]; XB = [24, 26, 28, 30]; XN = 32
    g.e("s_lshl_b32 s3, s71, 13")
    g.e("v_lshl_add_u32 v3, v2, 10, s3")
    g.e("v_lshl_add_u32 v3, v1, 2, v3")
    g.e("v_lshlrev_b32 v4, 3, v1")
    XR = [40+j for j in range(8)]
    SCm = [48+2*j for j in range(8)]
    SH = [64+2*j for j in range(8)]
    GA = [128+2*j for j in range(8)]
    TW1 = [80+2*j for j in range(7)]
    TW2 = [94+2*j for j in range(7)]
    TWS = [108+2*j for j in range(4)]
    for j in range(8):
        g.e(f"buffer_load_dword v{XR[j]}, v3, s[8:11], 0 offen offset:{128*j}")
    g.e("s_movk_i32 s45, 4096")
    g.e("s_movk_i32 s46, 8192")
    for j in range(8):
        g.e(f"buffer_load_dwordx2 {P(GA[j])}, v4, s[12:15], s45 offen offset:{256*j}{SC}")
        g.e(f"buffer_load_dwordx2 {P(SH[j])}, v4, s[12:15], s45 offen offset:{2048+256*j}{SC}")
        g.e(f"buffer_load_dwordx2 {P(SCm[j])}, v4, s[12:15], s46 offen offset:{256*j}{SC}")
    g.e("v_cvt_f32_u32 v5, v1")
    g.e(f"v_mul_f32 v5, 0x{f2u(1/256):08x}, v5")
    gen_tw(g, TW1, 5, range(1, 8), 6)
    g.e("v_and_b32 v7, 3, v0")
    g.e("v_cvt_f32_u32 v5, v7")
    g.e(f"v_mul_f32 v5, 0x{f2u(1/32):08x}, v5")
    gen_tw(g, TW2, 5, range(1, 8), 6)
    g.e("v_cvt_f32_u32 v5, v8")
    g.e(f"v_mul_f32 v5, 0x{f2u(1/512):08x}, v5")
    for q in range(4):
        g.e(f"v_add_f32 v6, 0x{f2u(q/8):08x}, v5")
        g.e(f"v_cos_f32 v{TWS[q]}, v6")
        g.e(f"v_sin_f32 v{TWS[q]+1}, -v6")
    g.e(f"v_mul_u32_u24 v15, {F_RS}, v14")
    g.e(f"v_add_u32 v15, {LDS_F}, v15")
    g.e("v_lshl_add_u32 v10, v8, 5, v15")
    g.e("v_lshl_add_u32 v15, v9, 5, v15")
    E, D, Tt = 34, 36, 38
    ZA = [144, 146, 148, 150]; ZB = [152, 154, 156, 158]
    g.e("s_waitcnt vmcnt(0)")
    wait(g, 3, "c")
    for q in range(4):
        g.e(f"buffer_load_dwordx2 {P(XA[q])}, v13, s[16:19], s{40+q} offen{SC}")
        g.e(f"buffer_load_dwordx2 {P(XB[q])}, v11, s[16:19], s{40+q} offen{SC}")
    g.e("s_waitcnt vmcnt(0)")
    g.e("s_mov_b64 vcc, s[56:57]")
    g.e("s_mov_b64 s[50:51], exec")
    g.e("s_andn2_b64 exec, exec, vcc")
    for q in range(4):
        merge_pair(g, XA[q], XB[3-q], P(TWS[q]), E, D, Tt, ZA[q], ZB[3-q])
    g.e("s_and_b64 exec, s[50:51], vcc")
    g.e("s_cbranch_execz l3_nospecial")
    g.e(f"v_mov_b32 v{XN}, v{XA[0]+1}")
    g.e(f"v_mov_b32 v{XA[0]+1}, 0")
    g.e(f"v_mov_b32 v{XN+1}, 0")
    pairs = [(XA[0], XN, 0, ZA[0], 160), (XA[1], XA[3], 64, ZA[1], ZA[3]), (XA[2], XA[2], 128, ZA[2], 160),
             (XB[0], XB[3], 32, ZB[0], ZB[3]), (XB[1], XB[2], 96, ZB[1], ZB[2])]
    for (a, b, k, oa, ob) in pairs:
        const_tw(g, 52, k, 512)
        merge_pair(g, a, b, "s[52:53]", E, D, Tt, oa, ob)
    g.lab("l3_nospecial")
    g.e("s_mov_b64 exec, s[50:51]")
    YA, f0 = dft4(g, ZA, [16, 18], +1)
    YB, f1 = dft4(g, ZB, [20, 22], +1)
    for t0 in range(4):
        g.e(f"ds_write_b64 v10, {P(YA[t0])} offset:{8*t0}")
        g.e(f"ds_write_b64 v15, {P(YB[t0])} offset:{8*t0}")
    g.e("s_waitcnt lgkmcnt(0)")
    g.e("s_barrier")
    g.e("v_bfe_u32 v11, v0, 2, 3")
    g.e(f"v_mul_u32_u24 v13, {F_RS}, v2")
    g.e("v_lshl_add_u32 v13, v11, 5, v13")
    g.e("v_lshl_add_u32 v13, v7, 3, v13")
    g.e(f"v_add_u32 v13, {LDS_F}, v13")
    Z = [16+2*j for j in range(8)]; T = [32, 34, 36, 38]
    for p in range(8):
        g.e(f"ds_read_b64 {P(Z[p])}, v13 offset:{256*p}")
    g.e("v_mul_u32_u24 v9, 2304, v2")
    g.e("v_lshl_add_u32 v10, v1, 3, v9")
    g.e("v_mul_u32_u24 v12, 288, v11")
    g.e("v_add_u32 v12, v12, v9")
    g.e("v_lshl_add_u32 v12, v7, 3, v12")
    g.e("s_waitcnt lgkmcnt(0)")
    for p in range(1, 8):
        cmul(g, Z[p], Z[p], TW2[p-1], T[0], conj=True)
    y, free = dft8(g, Z, T, +1, KS)
    for t1 in range(8):
        g.e(f"ds_write_b64 v12, {P(y[t1])} offset:{32*t1}")
    allr = y + free; x = allr[:8]; T2 = allr[8:]
    for r in range(8):
        g.e(f"ds_read_b64 {P(x[r])}, v10 offset:{288*r}")
    g.e("s_waitcnt lgkmcnt(0)")
    for r in range(1, 8):
        cmul(g, x[r], x[r], TW1[r-1], T2[0], conj=True)
    y, free = dft8(g, x, T2, +1, KS)
    g.e(f"s_mov_b32 s62, 0x{f2u(2.0**-21):08x}")
    g.e(f"s_mov_b32 s63, 0x{f2u(2.0**-21):08x}")
    tp = 124
    g.e("v_mul_u32_u24 v13, 1040, v2")
    g.e("v_lshl_add_u32 v13, v1, 2, v13")
    g.e("v_add_u32 v13, 40960, v13")
    for j in range(8):
        r = y[j]
        g.e(f"v_pk_mul_f32 {P(r)}, {P(r)}, s[62:63]")
        round_pair(g, r, tp)
        g.e(f"v_pk_mul_f32 {P(r)}, {P(r)}, {P(GA[j])}")
        round_pair(g, r, tp)
        g.e(f"v_lshlrev_b32 v{tp+2}, 16, v{XR[j]}")
        g.e(f"v_and_b32 v{tp+3}, 0xffff0000, v{XR[j]}")
        g.e(f"v_pk_add_f32 {P(r)}, {P(r)}, {P(tp+2)}")
        round_pair(g, r, tp)
        g.e(f"ds_write_b32 v13, v{tp} offset:{128*j}")
    ln_mod(g, y, SCm, SH, 120, 121, 122, 123, 124)
    for j in range(8):
        g.e(f"v_cvt_pk_bf16_f32 v{XR[j]}, v{y[j]}, v{y[j]+1}")
        g.e(f"ds_write_b32 v13, v{XR[j]} offset:{8320+128*j}")
    g.e("s_waitcnt lgkmcnt(0)")
    g.e("s_barrier")
    g.e("v_and_b32 v14, 7, v0")
    g.e("v_lshrrev_b32 v8, 3, v0")
    g.e("v_mul_u32_u24 v13, 1040, v14")
    g.e("v_lshl_add_u32 v13, v8, 4, v13")
    g.e("v_add_u32 v13, 40960, v13")
    g.e("ds_read_b128 v[16:19], v13")
    g.e("ds_read_b128 v[20:23], v13 offset:512")
    g.e("ds_read_b128 v[24:27], v13 offset:8320")
    g.e("ds_read_b128 v[28:31], v13 offset:8832")
    g.e("s_lshl_b32 s3, s71, 13")
    g.e("v_lshl_add_u32 v10, v14, 10, s3")
    g.e("v_lshl_add_u32 v10, v8, 4, v10")
    g.e("s_lshr_b32 s3, s71, 1")
    g.e("s_lshl_b32 s3, s3, 14")
    g.e("s_and_b32 s47, s71, 1")
    g.e("s_lshl_b32 s47, s47, 7")
    g.e("s_add_u32 s3, s3, s47")
    g.e("v_lshl_add_u32 v11, v8, 8, s3")
    g.e("v_lshl_add_u32 v11, v14, 4, v11")
    g.e("s_movk_i32 s47, 8192")
    g.e("s_waitcnt lgkmcnt(0)")
    st_dual(g, "buffer_store_dwordx4 v[16:19], v10, s[20:23], 0 offen")
    st_dual(g, "buffer_store_dwordx4 v[20:23], v10, s[20:23], 0 offen offset:512")
    st_dual(g, "buffer_store_dwordx4 v[24:27], v11, s[24:27], 0 offen")
    st_dual(g, "buffer_store_dwordx4 v[28:31], v11, s[24:27], s47 offen")

def g1_prefetch(g):
    g.e("s_bfe_u32 s20, s71, 0x40001")
    g.e("v_and_b32 v2, 63, v0")
    srd(g, 12, 4, WS_W1P, 16*16*7*1024)
    g.e("v_lshlrev_b32 v7, 4, v2")
    g.e("s_mul_i32 s25, s20, 114688")
    g.e("s_lshl_b32 s26, s95, 10")
    g.e("s_add_u32 s25, s25, s26")
    g.e("s_mov_b32 s27, s26")
    for i in range(14):
        g.e("s_mov_b32 m0, s27")
        g.e("s_add_u32 s27, s27, 8192")
        g.e(f"buffer_load_dwordx4 v7, s[12:15], s25 offen lds")
        g.e("s_add_u32 s25, s25, 8192")

def phase_g1(g):
    g.e("s_lshr_b32 s21, s71, 5")
    g.e("s_lshl_b32 s21, s21, 1")
    g.e("s_and_b32 s20, s71, 1")
    g.e("s_add_u32 s21, s21, s20")
    g.e("s_bfe_u32 s20, s71, 0x40001")
    g.e("s_and_b32 s22, s95, 3")
    g.e("s_lshr_b32 s34, s95, 2")
    g.e("v_and_b32 v2, 63, v0")
    g.e("v_and_b32 v3, 15, v0")
    g.e("v_bfe_u32 v4, v0, 4, 2")
    srd(g, 8, 4, WS_H2, 2048*1024)
    srd(g, 16, 4, WS_HID, 128*56*1024)
    g.e("s_lshl_b32 s23, s21, 3")
    g.e("s_lshl_b32 s24, s22, 1")
    g.e("s_add_u32 s23, s23, s24")
    g.e("s_lshl_b32 s23, s23, 14")
    g.e("v_lshl_add_u32 v5, v2, 4, s23")
    g.e("v_add_u32 v6, 16384, v5")
    g.e("v_lshlrev_b32 v7, 4, v2")
    g.e("s_lshl_b32 s35, s34, 12")
    g.e("v_add_u32 v7, s35, v7")
    g.e("v_add_u32 v8, 57344, v7")
    HB = [[64 + (mf*16+ks)*4 for ks in range(16)] for mf in range(2)]
    ACC = [[224 + (mf*4+nf)*4 for nf in range(4)] for mf in range(2)]
    ACC = [[192 + (mf*4+nf)*4 for nf in range(4)] for mf in range(2)]
    for i in range(32):
        g.e(f"v_mov_b32 v{192+i}, 0")
    g.e("v_lshrrev_b32 v9, 1, v4")
    g.e("v_lshlrev_b32 v9, 8, v9")
    g.e("v_lshl_add_u32 v9, v3, 4, v9")
    g.e("v_and_b32 v10, 1, v4")
    g.e("v_mul_u32_u24 v10, 57344, v10")
    g.e("v_add_u32 v9, v9, v10")
    g.e("s_lshl_b32 s28, s21, 3")
    g.e("s_lshl_b32 s29, s22, 1")
    g.e("s_add_u32 s28, s28, s29")
    g.e("s_mul_i32 s28, s28, 57344")
    g.e("s_mul_i32 s30, s20, 7")
    g.e("s_lshl_b32 s29, s34, 2")
    g.e("s_add_u32 s30, s30, s29")
    g.e(f"s_mov_b32 s40, 0x{f2u(-math.log2(math.e)):08x}")
    g.e(f"s_mov_b32 s41, 0x{f2u(-math.log2(math.e)):08x}")
    g.e("s_movk_i32 s45, 4096")
    g.e("s_movk_i32 s46, 8192")
    g.e("s_movk_i32 s47, 12288")
    g.e("s_mov_b32 s42, 1.0")
    g.e("s_mov_b32 s43, 1.0")
    g.e("s_waitcnt vmcnt(0)")
    wait(g, 4, "d")
    for ks in range(16):
        so = "0" if ks < 4 else f"s{44+ks//4}"
        g.e(f"buffer_load_dwordx4 v[{HB[0][ks]}:{HB[0][ks]+3}], v5, s[8:11], {so} offen offset:{1024*(ks%4)}")
        g.e(f"buffer_load_dwordx4 v[{HB[1][ks]}:{HB[1][ks]+3}], v6, s[8:11], {so} offen offset:{1024*(ks%4)}")
    if PROFILE:
        g.e("s_waitcnt vmcnt(0)")
        g.e("s_memrealtime s[88:89]")
        g.e("s_waitcnt lgkmcnt(0)")
        g.e("v_writelane_b32 v248, s88, 19")
    def epi(nf):
        L = []
        for mf in range(2):
            a = ACC[mf][nf]
            o = 16 + 8*mf
            for h in (0, 2):
                L.append(f"v_cvt_pk_bf16_f32 v{o+4}, v{a+h}, v{a+h+1}")
                L.append(f"v_lshlrev_b32 v{o+h}, 16, v{o+4}")
                L.append(f"v_and_b32 v{o+h+1}, 0xffff0000, v{o+4}")
            L.append(f"v_pk_mul_f32 {P(o+4)}, {P(o)}, s[40:41]")
            L.append(f"v_pk_mul_f32 {P(o+6)}, {P(o+2)}, s[40:41]")
            for i in range(4):
                L.append(f"v_exp_f32 v{o+4+i}, v{o+4+i}")
            L.append(f"v_pk_add_f32 {P(o+4)}, {P(o+4)}, s[42:43]")
            L.append(f"v_pk_add_f32 {P(o+6)}, {P(o+6)}, s[42:43]")
            for i in range(4):
                L.append(f"v_rcp_f32 v{o+4+i}, v{o+4+i}")
            L.append(f"v_pk_mul_f32 {P(o)}, {P(o)}, {P(o+4)}")
            L.append(f"v_pk_mul_f32 {P(o+2)}, {P(o+2)}, {P(o+6)}")
            L.append(f"v_cvt_pk_bf16_f32 v{12+2*mf}, v{o}, v{o+1}")
            L.append(f"v_cvt_pk_bf16_f32 v{13+2*mf}, v{o+2}, v{o+3}")
        L.append(f"s_add_u32 s31, s30, {nf}")
        L.append("s_lshr_b32 s32, s31, 1")
        L.append("s_lshl_b32 s32, s32, 10")
        L.append("s_and_b32 s33, s31, 1")
        L.append("s_lshl_b32 s33, s33, 9")
        L.append("s_add_u32 s32, s32, s33")
        L.append("s_add_u32 s32, s32, s28")
        L.append("v_permlane16_swap_b32 v12, v14")
        L.append("v_permlane16_swap_b32 v13, v15")
        L.append("s_nop 0")
        L.append(("dual", "buffer_store_dwordx4 v[12:15], v9, s[16:19], s32 offen"))
        L.append("s_nop 1")
        return L
    def emit(l):
        if isinstance(l, tuple):
            st_dual(g, l[1])
        else:
            g.e(l)
    def body(NNF, tag, first):
        steps = [(nf, ks) for nf in range(NNF) for ks in range(16)]
        NS = len(steps); AH = 6
        def wr(si):
            return 224 + (si % 6)*4 if False else 40 + (si % 6)*4
        def rd(si):
            nf, ks = steps[si]
            base = "v7" if ks < 8 else "v8"
            off = (ks*7+nf)*1024 - (0 if ks < 8 else 57344)
            g.e(f"ds_read_b128 v[{wr(si)}:{wr(si)+3}], {base} offset:{off}")
        AH = 5
        for si in range(AH):
            rd(si)
        pend = []
        for si, (nf, ks) in enumerate(steps):
            if si + AH < NS:
                rd(si+AH)
            lg = min(AH, NS-1-si)
            if nf == 0:
                g.e(f"s_waitcnt vmcnt({2*(15-ks)}) lgkmcnt({lg})")
            else:
                g.e(f"s_waitcnt lgkmcnt({lg})")
            for mf in range(2):
                a = ACC[mf][nf]
                g.e(f"v_mfma_f32_16x16x32_bf16 v[{a}:{a+3}], v[{wr(si)}:{wr(si)+3}], v[{HB[mf][ks]}:{HB[mf][ks]+3}], v[{a}:{a+3}]")
            if ks == 15 and PROFILE:
                g.e("s_memrealtime s[88:89]")
                g.e("s_waitcnt lgkmcnt(0)")
                g.e(f"v_writelane_b32 v248, s88, {20+nf}")
            if ks == 4 and nf > 0:
                pend = epi(nf-1)
            for _ in range(5):
                if pend:
                    emit(pend.pop(0))
        while pend:
            emit(pend.pop(0))
        g.e("s_nop 15")
        for l in epi(NNF-1):
            emit(l)
    g.e("s_cmp_lg_u32 s34, 0")
    g.e("s_cbranch_scc1 g1_cg1")
    body(4, "a", True)
    g.e("s_branch g1_end")
    g.lab("g1_cg1")
    body(3, "b", False)
    g.lab("g1_end")

def wreg(ks, nf):
    return 80 + (ks*4+nf)*4

def g2_prefetch(g):
    g.e("s_load_dwordx2 s[6:7], s[0:1], 64")
    g.e("s_bfe_u32 s20, s71, 0x30002")
    g.e("s_lshr_b32 s21, s71, 5")
    g.e("s_lshl_b32 s21, s21, 2")
    g.e("s_and_b32 s22, s71, 3")
    g.e("s_add_u32 s21, s21, s22")
    g.e("v_and_b32 v2, 63, v0")
    g.e("v_and_b32 v3, 15, v0")
    g.e("v_bfe_u32 v4, v0, 4, 2")
    g.e("s_waitcnt lgkmcnt(0)")
    srd(g, 8, 4, WS_HID, 128*56*1024)
    srd(g, 12, 4, WS_W2P, 8*56*4*1024)
    srd(g, 16, 6, 0, 2048*1024)
    srd(g, 80, 4, WS_X1, 2048*1024)
    srd(g, 84, 4, WS_MOD, 3072*4)
    g.e("v_lshlrev_b32 v7, 4, v2")
    g.e("s_mul_i32 s23, s95, 7")
    g.e("s_mul_i32 s24, s20, 56")
    g.e("s_add_u32 s24, s24, s23")
    g.e("s_lshl_b32 s24, s24, 12")
    for mf in range(4):
        g.e(f"s_lshl_b32 s{32+mf}, s21, 2")
        g.e(f"s_add_u32 s{32+mf}, s{32+mf}, {mf}")
        g.e(f"s_mul_i32 s{32+mf}, s{32+mf}, 56")
        g.e(f"s_add_u32 s{32+mf}, s{32+mf}, s23")
        g.e(f"s_lshl_b32 s{32+mf}, s{32+mf}, 10")
    for ks in range(7):
        for nf in range(4):
            w = wreg(ks, nf)
            g.e(f"buffer_load_dwordx4 v[{w}:{w+3}], v7, s[12:15], s24 offen offset:{1024*nf}")
        g.e("s_add_u32 s24, s24, 4096")

def phase_g2(g):
    HD = 3
    def hreg(ks, mf):
        return 192 + ((ks % HD)*4+mf)*4
    for i in range(64):
        g.e(f"v_mov_b32 v{16+i}, 0")
    g.e("s_waitcnt vmcnt(0)")
    wait(g, 5, "e")
    def issue_h(ks):
        for mf in range(4):
            h = hreg(ks, mf)
            g.e(f"buffer_load_dwordx4 v[{h}:{h+3}], v7, s[8:11], s{32+mf} offen")
            g.e(f"s_add_u32 s{32+mf}, s{32+mf}, 1024")
    for ks in range(HD):
        issue_h(ks)
    for ks in range(7):
        after = min(7, ks+HD) - (ks+1)
        g.e(f"s_waitcnt vmcnt({4*after})")
        for mf in range(4):
            for nf in range(4):
                a = 16 + (mf*4+nf)*4
                w = wreg(ks, nf); h = hreg(ks, mf)
                g.e(f"v_mfma_f32_16x16x32_bf16 v[{a}:{a+3}], v[{w}:{w+3}], v[{h}:{h+3}], v[{a}:{a+3}]")
        if ks + HD < 7:
            issue_h(ks+HD)
    g.e("s_lshr_b32 s25, s95, 1")
    g.e("s_and_b32 s26, s95, 1")
    g.e("s_lshl_b32 s27, s20, 7")
    g.e("v_lshl_add_u32 v11, v4, 3, s27")
    g.e("s_lshl_b32 s31, s26, 6")
    g.e("v_add_u32 v11, s31, v11")
    g.e("v_lshlrev_b32 v12, 1, v11")
    g.e("s_movk_i32 s28, 10240")
    g.e("s_lshl_b32 s30, s21, 6")
    g.e("s_lshl_b32 s31, s25, 4")
    g.e("s_add_u32 s30, s30, s31")
    g.e("v_add_u32 v10, s30, v3")
    g.e("v_lshlrev_b32 v10, 10, v10")
    g.e("v_add_u32 v10, v10, v11")
    for nf in range(2):
        g.e(f"buffer_load_dwordx4 v[{80+4*nf}:{83+4*nf}], v12, s[84:87], s28 offen offset:{64*nf}")
        g.e(f"buffer_load_dwordx2 v[{88+2*nf}:{89+2*nf}], v10, s[80:83], 0 offen offset:{32*nf}")
    g.e("s_nop 7")
    g.e("s_lshl_b32 s29, s95, 14")
    g.e("v_add_u32 v8, s29, v7")
    for f in range(16):
        g.e(f"ds_write_b128 v8, v[{16+4*f}:{19+4*f}] offset:{1024*f}")
    g.e("s_waitcnt lgkmcnt(0)")
    g.e("s_barrier")
    g.e("s_lshl_b32 s27, s25, 12")
    g.e("s_lshl_b32 s29, s26, 11")
    g.e("s_add_u32 s27, s27, s29")
    g.e("v_add_u32 v8, s27, v7")
    g.e("v_add_u32 v9, 65536, v8")
    for p in range(8):
        base = "v8" if p < 4 else "v9"
        for nf in range(2):
            g.e(f"ds_read_b128 v[{96+8*p+4*nf}:{99+8*p+4*nf}], {base} offset:{16384*(p%4)+1024*nf}")
    g.e("s_waitcnt lgkmcnt(0)")
    for st in (4, 2, 1):
        for p in range(st):
            for i in range(0, 8, 2):
                g.e(f"v_pk_add_f32 {P(96+8*p+i)}, {P(96+8*p+i)}, {P(96+8*(p+st)+i)}")
    g.e("s_waitcnt vmcnt(0)")
    for nf in range(2):
        for h in range(2):
            r = 96+4*nf+2*h
            round_pair(g, r, 12)
            g.e(f"v_pk_mul_f32 {P(r)}, {P(r)}, {P(80+4*nf+2*h)}")
            round_pair(g, r, 12)
            g.e(f"v_lshlrev_b32 v14, 16, v{88+2*nf+h}")
            g.e(f"v_and_b32 v15, 0xffff0000, v{88+2*nf+h}")
            g.e(f"v_pk_add_f32 {P(r)}, {P(r)}, {P(14)}")
            g.e(f"v_cvt_pk_bf16_f32 v{112+2*nf+h}, v{r}, v{r+1}")
        g.e(f"buffer_store_dwordx2 v[{112+2*nf}:{113+2*nf}], v10, s[16:19], 0 offen offset:{32*nf}")

def main(out_path):
    g = G()
    name = NAME + "_kernel"
    g.raw(f".globl {name}")
    g.raw(".p2align 8")
    g.raw(f".type {name},@function")
    g.raw(f"{name}:")
    g.e("s_cmp_ge_u32 s2, 256")
    g.e("s_cbranch_scc1 k_done")
    g.e("s_load_dwordx2 s[4:5], s[0:1], 80")
    g.e("s_load_dwordx2 s[90:91], s[0:1], 72")
    g.e("v_lshrrev_b32 v1, 6, v0")
    g.e("s_nop 0")
    g.e("v_readfirstlane_b32 s95, v1")
    g.e("s_waitcnt lgkmcnt(0)")
    srd(g, 96, 90, 0, 256)
    srd(g, 76, 4, WS_FLAG, 256*64)
    g.e("s_lshl_b32 s94, s2, 6")
    g.e("v_mov_b32 v255, s94")
    g.e("v_mov_b32 v254, 0")
    g.e("buffer_store_dword v254, v255, s[76:79], 0 offen sc1")
    srd(g, 64, 4, WS_FLAG2, 256*64)
    g.e("buffer_store_dword v254, v255, s[64:67], 0 offen sc1")
    g.e("s_cmp_lg_u32 s95, 0")
    g.e("s_cbranch_scc1 no_rank")
    rank_issue(g)
    g.lab("no_rank")
    if PROFILE:
        srd(g, 72, 4, WS_PROF, 256*1024)
    stamp(g)
    task_mod(g)
    g.e("s_cmp_ge_u32 s95, 4")
    g.e("s_cbranch_scc1 helper")
    arrive(g, 1, "a")
    l1_prefetch(g)
    stamp(g)
    g.e("s_cmp_lt_u32 s2, 48")
    g.e("s_cbranch_scc1 m_nowt")
    g.e("s_sub_u32 s70, s2, 48")
    task_wt(g, 70, "m")
    g.lab("m_nowt")
    stamp(g)
    phase_l1(g)
    stamp(g)
    arrive(g, 2, "b")
    stamp(g)
    phase_l2(g)
    stamp(g)
    arrive(g, 3, "c")
    stamp(g)
    phase_l3(g)
    stamp(g)
    arrive(g, 4, "d")
    g1_prefetch(g)
    g.e("s_branch join")
    g.lab("helper")
    g.e("v_subrev_u32 v0, 256, v0")
    if PRETOUCH:
        srd(g, 8, 4, 0, WS_END)
        g.e("v_lshlrev_b32 v1, 16, v0")
        g.e("buffer_load_dword v2, v1, s[8:11], 0 offen offset:128")
        g.e("s_mov_b32 s12, 0x1000000")
        g.e("buffer_load_dword v3, v1, s[8:11], s12 offen offset:128")
        g.e("s_waitcnt vmcnt(0)")
    g.e("s_cmp_lt_u32 s2, 48")
    g.e("s_cbranch_scc1 h_nowt")
    g.e("s_cmp_ge_u32 s2, 96")
    g.e("s_cbranch_scc1 h_nowt")
    g.e("s_add_u32 s70, s2, 160")
    task_wt(g, 70, "a")
    g.lab("h_nowt")
    task_wab(g)
    g.e("s_barrier")
    g.e("s_barrier")
    g.e("s_waitcnt vmcnt(0)")
    g.e("s_barrier")
    task_w1(g)
    g.e("s_barrier")
    g.e("s_barrier")
    g.e("s_cmp_lg_u32 s2, 0")
    g.e("s_cbranch_scc1 h_nocol0")
    g.e("s_barrier")
    g.lab("h_nocol0")
    g.e("s_barrier")
    g.e("s_waitcnt vmcnt(0)")
    g.e("s_barrier")
    task_w2(g)
    g.e("s_barrier")
    g.e("s_barrier")
    g.e("s_barrier")
    g.e("v_add_u32 v0, 256, v0")
    lid_read(g)
    g.e("s_waitcnt vmcnt(0)")
    g.e("s_barrier")
    g1_prefetch(g)
    g.lab("join")
    stamp(g)
    phase_g1(g)
    stamp(g)
    g2_prefetch(g)
    arrive(g, 5, "e")
    stamp(g)
    phase_g2(g)
    stamp(g)
    if PROFILE:
        g.e("v_writelane_b32 v248, s71, 28")
        g.e("v_writelane_b32 v248, s69, 29")
        g.e("v_writelane_b32 v248, s68, 30")
    stamp_flush(g)
    g.lab("k_done")
    g.e("s_endpgm")
    hdr = open("cdna_kernels/" + NAME + ".s.ref").read().split("\n")
    head = []
    for l in hdr:
        if l.startswith("; Override"):
            break
        head.append(l)
    txt = "\n".join(head) + "\n"
    txt += f"; @launch grid=(256,1,1) block=(512,1,1) lds=131136\n"
    txt += '.amdgcn_target "amdgcn-amd-amdhsa--gfx950"\n.text\n'
    txt += "\n".join(g.L) + "\n"
    txt += '.section .rodata,"a"\n.p2align 6\n'
    txt += f""".amdhsa_kernel {name}
  .amdhsa_next_free_vgpr 256
  .amdhsa_next_free_sgpr 102
  .amdhsa_accum_offset 256
  .amdhsa_group_segment_fixed_size 0
  .amdhsa_kernarg_size 88
  .amdhsa_user_sgpr_count 2
  .amdhsa_user_sgpr_kernarg_segment_ptr 1
  .amdhsa_system_sgpr_workgroup_id_x 1
.end_amdhsa_kernel
"""
    open(out_path, "w").write(txt)

if __name__ == "__main__":
    if len(sys.argv) > 2 and sys.argv[2] == "prof":
        PROFILE = True
    main(sys.argv[1] if len(sys.argv) > 1 else "cdna_kernels/" + NAME + ".s")
```

```python
import sys, math, struct
from gen_multi import (G, P, f2u, cadd, csub, cadd_mi, cadd_pi, cadd_s, cmul, dft8, dft4, gen_tw, srd,
                       allreduce32, round_pair, round1, ln_mod, split_pair, merge_pair, const_tw, set_k, KS, NAME)

WS_MOD  = 0
WS_WAB  = 0x4000
WS_FLAG = 0xC000
WS_WT   = 0x10000
WS_W1P  = WS_WT + 256*8192
WS_W2P  = WS_W1P + 16*16*7*1024
WS_XD   = WS_W2P + 8*56*4*1024
WS_XD   = (WS_XD + 0xFFFF) & ~0xFFFF
WS_ZS   = WS_XD + 256*16384
WS_X1   = WS_ZS + 256*16384
WS_H2   = WS_X1 + 2048*1024
WS_HID  = WS_H2 + 2048*1024
WS_FLAG2 = WS_HID + 128*56*1024
WS_END  = WS_FLAG2 + 256*64

SC = ""
SCS = " sc1"

LDS_X1 = 0
LDS_F  = 8*2304
F_RS   = 2064
LDS_MIR = 16384 + 8*2304
LDS_LID = 131072
FORCE_SLOW = False
PRETOUCH = False
CODEPF = 16

PROFILE = False
WS_PROF = WS_END
_pidx = [0]
def stamp(g):
    if not PROFILE:
        return
    i = _pidx[0]; _pidx[0] += 1
    g.e("s_memrealtime s[88:89]")
    g.e("s_waitcnt lgkmcnt(0)")
    g.e(f"v_writelane_b32 v248, s88, {i}")

def stamp_flush(g):
    if not PROFILE:
        return
    g.e("s_lshl_b32 s88, s2, 10")
    g.e("s_lshl_b32 s89, s95, 7")
    g.e("s_add_u32 s88, s88, s89")
    g.e("v_and_b32 v255, 63, v0")
    g.e("v_lshl_add_u32 v255, v255, 2, s88")
    g.e("s_mov_b64 exec, 0xffffffff")
    g.e("buffer_store_dword v248, v255, s[72:75], 0 offen")

_sid = [0]
def st_dual(g, instr):
    k = _sid[0]; _sid[0] += 1
    g.e("s_cmp_eq_u32 s69, 1")
    g.e(f"s_cbranch_scc1 sdf_{k}")
    g.e(instr + SCS)
    g.e(f"s_branch sde_{k}")
    g.lab(f"sdf_{k}")
    g.e(instr)
    g.lab(f"sde_{k}")

def arrive(g, val, tag):
    local = val >= 4
    g.e("s_waitcnt vmcnt(28) lgkmcnt(0)" if val == 5 else "s_waitcnt vmcnt(0) lgkmcnt(0)")
    if val == 5 and PROFILE:
        g.e("s_memrealtime s[88:89]")
        g.e("s_waitcnt lgkmcnt(0)")
        g.e("v_writelane_b32 v248, s88, 24")
    if val != 1:
        g.e("s_barrier")
    g.e("s_cmp_lg_u32 s95, 0")
    g.e(f"s_cbranch_scc1 arr_skip_{tag}")
    g.e("s_mov_b64 s[92:93], exec")
    g.e("s_mov_b64 exec, 1")
    if val == 1:
        g.e("s_and_b32 s94, s2, 3")
        g.e("s_lshl_b32 s94, s94, 6")
        g.e("v_mov_b32 v255, s94")
        g.e("v_mov_b32 v254, 1")
        g.e(f"buffer_atomic_add v254, v255, s[96:99], 0 offen sc1")
    elif not local:
        g.e("s_lshl_b32 s94, s2, 6")
        g.e("v_mov_b32 v255, s94")
        g.e(f"v_mov_b32 v254, {val}")
        g.e(f"buffer_store_dword v254, v255, s[76:79], 0 offen sc1")
    else:
        g.e("s_lshl_b32 s94, s71, 6")
        g.e("v_mov_b32 v255, s94")
        g.e(f"v_mov_b32 v254, {val}")
        st_dual(g, "buffer_store_dword v254, v255, s[64:67], 0 offen")
    g.e("s_mov_b64 exec, s[92:93]")
    g.lab(f"arr_skip_{tag}")

def wait(g, val, tag):
    local = val >= 4
    g.e("s_cmp_lg_u32 s95, 0")
    g.e(f"s_cbranch_scc1 wait_skip_{tag}")
    g.e("v_and_b32 v253, 63, v0")
    g.e("v_lshlrev_b32 v253, 6, v253")
    if val == 1:
        g.e("s_mov_b64 s[92:93], exec")
        g.e("s_mov_b64 exec, 15")
        g.lab(f"wait_loop_{tag}")
        g.e(f"buffer_load_dword v254, v253, s[96:99], 0 offen sc1")
        g.e("s_waitcnt vmcnt(0)")
        g.e("v_cmp_gt_u32 vcc, 64, v254")
        g.e("s_cmp_eq_u64 vcc, 0")
        g.e(f"s_cbranch_scc0 wait_loop_{tag}")
        g.e("s_mov_b64 exec, s[92:93]")
    else:
        sr = "s[64:67]" if local else "s[76:79]"
        if local:
            g.e("s_cmp_eq_u32 s69, 1")
            g.e(f"s_cbranch_scc0 wait_loop_{tag}")
            g.e("s_lshr_b32 s94, s71, 5")
            g.e("s_lshl_b32 s94, s94, 11")
            g.e("s_mov_b64 s[92:93], exec")
            g.e("s_mov_b64 exec, 0xffffffff")
            g.lab(f"wait_floop_{tag}")
            g.e(f"buffer_load_dword v254, v253, {sr}, s94 offen sc1")
            g.e("s_waitcnt vmcnt(0)")
            g.e(f"v_cmp_gt_u32 vcc, {val}, v254")
            g.e("s_cmp_eq_u64 vcc, 0")
            g.e(f"s_cbranch_scc0 wait_floop_{tag}")
            g.e("s_mov_b64 exec, s[92:93]")
            g.e(f"s_branch wait_skip_{tag}")
        g.lab(f"wait_loop_{tag}")
        for i in range(4):
            g.e(f"s_movk_i32 s94, {4096*i}")
            g.e(f"buffer_load_dword v{249+i}, v253, {sr}, s94 offen sc1")
        g.e("s_waitcnt vmcnt(0)")
        g.e("v_min_u32 v249, v249, v250")
        g.e("v_min_u32 v251, v251, v252")
        g.e("v_min_u32 v249, v249, v251")
        g.e(f"v_cmp_gt_u32 vcc, {val}, v249")
        g.e("s_cmp_eq_u64 vcc, 0")
        g.e(f"s_cbranch_scc0 wait_loop_{tag}")
    g.lab(f"wait_skip_{tag}")
    g.e("s_barrier")
    stamp(g)

def rank_issue(g):
    g.e("s_getreg_b32 s68, hwreg(HW_REG_XCC_ID, 0, 4)")
    g.e("s_and_b32 s68, s68, 7")
    g.e("s_and_b32 s94, s68, 3")
    g.e("s_lshl_b32 s94, s94, 6")
    g.e("s_lshr_b32 s3, s68, 2")
    g.e("s_lshl_b32 s3, s3, 2")
    g.e("s_add_u32 s94, s94, s3")
    g.e("s_add_u32 s94, s94, 8")
    g.e("s_mov_b64 s[92:93], exec")
    g.e("s_mov_b64 exec, 1")
    g.e("v_mov_b32 v255, s94")
    g.e("v_mov_b32 v239, 1")
    g.e("buffer_atomic_add v239, v255, s[96:99], 0 offen sc0 sc1")
    g.e("s_mov_b64 exec, s[92:93]")

def rank_resolve(g):
    g.e("s_cmp_lg_u32 s95, 0")
    g.e("s_cbranch_scc1 rr_skip")
    g.e("v_and_b32 v253, 7, v0")
    g.e("v_and_b32 v254, 3, v253")
    g.e("v_lshlrev_b32 v254, 6, v254")
    g.e("v_lshrrev_b32 v253, 2, v253")
    g.e("v_lshl_add_u32 v254, v253, 2, v254")
    g.e("buffer_load_dword v253, v254, s[96:99], 0 offen offset:8 sc1")
    g.e("s_waitcnt vmcnt(0)")
    g.e("v_cmp_ne_u32 vcc, 32, v253")
    g.e("v_readfirstlane_b32 s3, v239")
    g.e("s_lshl_b32 s94, s68, 5")
    g.e("s_add_u32 s94, s94, s3")
    g.e("s_cmp_eq_u64 vcc, 0")
    g.e("s_cselect_b32 s3, 1, 0")
    if FORCE_SLOW:
        g.e("s_mov_b32 s3, 0")
    g.e("s_cmp_eq_u32 s3, 1")
    g.e("s_cselect_b32 s94, s94, s2")
    g.e("v_mov_b32 v254, s94")
    g.e("v_mov_b32 v255, s3")
    g.e(f"v_mov_b32 v252, {LDS_LID}")
    g.e("ds_write_b64 v252, v[254:255]")
    g.lab("rr_skip")

def lid_read(g):
    g.e(f"v_mov_b32 v252, {LDS_LID}")
    g.e("ds_read_b64 v[254:255], v252")
    g.e("s_waitcnt lgkmcnt(0)")
    g.e("v_readfirstlane_b32 s71, v254")
    g.e("v_readfirstlane_b32 s69, v255")
    g.e("s_nop 3")

def task_mod(g):
    g.e("s_cmp_ge_u32 s2, 48")
    g.e("s_cbranch_scc1 mod_end")
    g.e("s_load_dwordx4 s[8:11], s[0:1], 48")
    g.e("v_lshrrev_b32 v1, 3, v0")
    g.e("v_and_b32 v2, 7, v0")
    g.e("v_lshlrev_b32 v3, 1, v1")
    g.e("s_movk_i32 s24, 6144")
    g.e("v_mul_lo_u32 v4, v1, s24")
    g.e("s_lshl_b32 s25, s2, 7")
    g.e("v_lshl_add_u32 v4, v2, 4, v4")
    g.e("v_add_u32 v4, s25, v4")
    g.e("s_waitcnt lgkmcnt(0)")
    srd(g, 12, 8, 0, 1024)
    srd(g, 16, 10, 0, 512*6144)
    srd(g, 20, 4, WS_MOD, 3072*4)
    for i in range(8):
        g.e(f"buffer_load_ushort v{16+i}, v3, s[12:15], 0 offen offset:{128*i}")
    g.e("s_mov_b32 s26, 0")
    for i in range(8):
        g.e(f"buffer_load_dwordx4 v[{32+4*i}:{35+4*i}], v4, s[16:19], s26 offen")
        g.e(f"s_add_u32 s26, s26, {64*6144}")
    for i in range(8):
        g.e(f"v_mov_b32 v{8+i}, 0")
    g.e("s_waitcnt vmcnt(8)")
    for i in range(8):
        r = 16+i
        g.e(f"v_lshlrev_b32 v{r}, 16, v{r}")
        g.e(f"v_mul_f32 v{24+i}, 0x{f2u(-math.log2(math.e)):08x}, v{r}")
    for i in range(8):
        g.e(f"v_exp_f32 v{24+i}, v{24+i}")
    for i in range(8):
        g.e(f"v_add_f32 v{24+i}, 1.0, v{24+i}")
    for i in range(8):
        g.e(f"v_rcp_f32 v{24+i}, v{24+i}")
    for i in range(8):
        g.e(f"v_mul_f32 v{16+i}, v{16+i}, v{24+i}")
    for i in range(8):
        round1(g, 16+i)
    for i in range(8):
        g.e(f"s_waitcnt vmcnt({7-i})")
        g.e(f"v_mov_b32 v7, v{16+i}")
        g.e(f"v_mov_b32 v6, v{16+i}")
        for q in range(4):
            w = 32+4*i+q
            g.e(f"v_lshlrev_b32 v4, 16, v{w}")
            g.e(f"v_and_b32 v5, 0xffff0000, v{w}")
            g.e(f"v_pk_fma_f32 {P(8+2*q)}, {P(4)}, {P(6)}, {P(8+2*q)}")
    g.e("v_lshlrev_b32 v5, 8, v1")
    g.e("v_lshl_add_u32 v5, v2, 5, v5")
    g.e("ds_write_b128 v5, v[8:11]")
    g.e("ds_write_b128 v5, v[12:15] offset:16")
    g.e("s_waitcnt lgkmcnt(0)")
    g.e("s_barrier")
    g.e("s_cmp_lg_u32 s95, 0")
    g.e("s_cbranch_scc1 mod_end")
    g.e("v_lshlrev_b32 v5, 2, v0")
    for i in range(64):
        g.e(f"ds_read_b32 v{32+i}, v5 offset:{256*i}")
    g.e("s_waitcnt lgkmcnt(0)")
    for st in (32, 16, 8, 4, 2):
        for i in range(0, st, 2):
            g.e(f"v_pk_add_f32 {P(32+i)}, {P(32+i)}, {P(32+i+st)}")
    g.e("v_add_f32 v32, v32, v33")
    round1(g, 32)
    g.e("s_lshr_b32 s26, s2, 3")
    g.e("s_cmp_eq_u32 s26, 1")
    g.e("s_cselect_b32 s27, 1, 0")
    g.e("s_cmp_eq_u32 s26, 4")
    g.e("s_cselect_b32 s27, 1, s27")
    g.e("s_cmp_eq_u32 s27, 0")
    g.e("s_cbranch_scc1 mod_st")
    g.e("v_add_f32 v32, 1.0, v32")
    round1(g, 32)
    g.lab("mod_st")
    g.e("s_lshl_b32 s26, s2, 8")
    g.e("v_add_u32 v5, s26, v5")
    g.e(f"buffer_store_dword v32, v5, s[20:23], 0 offen{SCS}")
    g.lab("mod_end")

def task_w1(g):
    g.e("s_load_dwordx2 s[8:9], s[0:1], 32")
    g.e("s_waitcnt lgkmcnt(0)")
    srd(g, 12, 8, 0, 512*3584)
    srd(g, 16, 4, WS_W1P, 16*16*7*1024)
    g.e("s_and_b32 s25, s2, 15")
    g.e("s_lshr_b32 s26, s2, 4")
    g.e("s_movk_i32 s27, 224")
    g.e("v_cmp_gt_u32 vcc, s27, v0")
    g.e("s_and_saveexec_b64 s[28:29], vcc")
    g.e("s_cbranch_execz w1_end")
    g.e("v_and_b32 v1, 7, v0")
    g.e("v_bfe_u32 v2, v0, 3, 2")
    g.e("v_lshrrev_b32 v3, 5, v0")
    g.e("s_lshl_b32 s27, s26, 5")
    g.e("v_lshl_add_u32 v4, v2, 3, s27")
    g.e("s_movk_i32 s30, 3584")
    g.e("v_mul_lo_u32 v4, v4, s30")
    g.e("s_mul_i32 s31, s25, 224")
    g.e("v_lshl_add_u32 v5, v3, 5, s31")
    g.e("v_lshl_add_u32 v5, v1, 2, v5")
    g.e("v_add_u32 v4, v4, v5")
    g.e("s_mov_b32 s32, 0")
    for e in range(8):
        g.e(f"buffer_load_dword v{8+e}, v4, s[12:15], s32 offen")
        g.e(f"s_add_u32 s32, s32, 3584")
    g.e("s_lshl_b32 s33, s25, 4")
    g.e("s_add_u32 s33, s33, s26")
    g.e("s_mul_i32 s33, s33, 7168")
    g.e("v_lshl_add_u32 v6, v3, 10, s33")
    g.e("v_lshl_add_u32 v6, v2, 8, v6")
    g.e("v_lshl_add_u32 v6, v1, 5, v6")
    g.e("s_mov_b32 s34, 0x05040100")
    g.e("s_mov_b32 s35, 0x07060302")
    g.e("s_waitcnt vmcnt(0)")
    for q in range(4):
        g.e(f"v_perm_b32 v{16+q}, v{9+2*q}, v{8+2*q}, s34")
        g.e(f"v_perm_b32 v{20+q}, v{9+2*q}, v{8+2*q}, s35")
    g.e(f"buffer_store_dwordx4 v[16:19], v6, s[16:19], 0 offen{SCS}")
    g.e(f"buffer_store_dwordx4 v[20:23], v6, s[16:19], 0 offen offset:16{SCS}")
    g.lab("w1_end")
    g.e("s_mov_b64 exec, s[28:29]")

def task_w2(g):
    g.e("s_cmp_ge_u32 s2, 224")
    g.e("s_cbranch_scc1 w2_end")
    g.e("s_load_dwordx2 s[8:9], s[0:1], 40")
    g.e("s_waitcnt lgkmcnt(0)")
    srd(g, 12, 8, 0, 1792*1024)
    srd(g, 16, 4, WS_W2P, 8*56*4*1024)
    g.e("s_and_b32 s25, s2, 7")
    g.e("s_lshr_b32 s26, s2, 3")
    g.e("v_and_b32 v1, 7, v0")
    g.e("v_bfe_u32 v2, v0, 3, 2")
    g.e("v_bfe_u32 v3, v0, 5, 2")
    g.e("v_lshrrev_b32 v7, 7, v0")
    g.e("s_lshl_b32 s27, s26, 1")
    g.e("v_add_u32 v7, s27, v7")
    g.e("v_lshlrev_b32 v4, 5, v7")
    g.e("v_lshl_add_u32 v4, v2, 3, v4")
    g.e("v_lshlrev_b32 v4, 10, v4")
    g.e("s_lshl_b32 s31, s25, 7")
    g.e("v_lshl_add_u32 v5, v3, 5, s31")
    g.e("v_lshl_add_u32 v5, v1, 2, v5")
    g.e("v_add_u32 v4, v4, v5")
    g.e("s_movk_i32 s36, 4096")
    for e in range(8):
        g.e(f"buffer_load_dword v{8+e}, v4, s[12:15], 0 offen offset:{1024*e}" if e < 4 else
            f"buffer_load_dword v{8+e}, v4, s[12:15], s36 offen offset:{1024*(e-4)}")
    g.e("s_mul_i32 s33, s25, 56")
    g.e("v_add_u32 v6, s33, v7")
    g.e("v_lshlrev_b32 v6, 12, v6")
    g.e("v_lshl_add_u32 v6, v3, 10, v6")
    g.e("v_lshl_add_u32 v6, v2, 8, v6")
    g.e("v_lshl_add_u32 v6, v1, 5, v6")
    g.e("s_mov_b32 s34, 0x05040100")
    g.e("s_mov_b32 s35, 0x07060302")
    g.e("s_waitcnt vmcnt(0)")
    for q in range(4):
        g.e(f"v_perm_b32 v{16+q}, v{9+2*q}, v{8+2*q}, s34")
        g.e(f"v_perm_b32 v{20+q}, v{9+2*q}, v{8+2*q}, s35")
    g.e(f"buffer_store_dwordx4 v[16:19], v6, s[16:19], 0 offen{SCS}")
    g.e(f"buffer_store_dwordx4 v[20:23], v6, s[16:19], 0 offen offset:16{SCS}")
    g.lab("w2_end")

def task_wt(g, idx_sreg, tag):
    g.e("s_load_dwordx4 s[8:11], s[0:1], 8")
    g.e("s_waitcnt lgkmcnt(0)")
    srd(g, 12, 8, 0, 2048*514)
    srd(g, 16, 10, 0, 2048*514)
    srd(g, 20, 4, WS_WT, 256*8192)
    g.e(f"s_and_b32 s25, s{idx_sreg}, 7")
    g.e(f"s_lshr_b32 s26, s{idx_sreg}, 3")
    g.e("s_and_b32 s27, s26, 7")
    g.e("s_lshr_b32 s26, s26, 3")
    g.e("v_and_b32 v1, 63, v0")
    g.e("s_lshl_b32 s28, s26, 6")
    g.e("v_add_u32 v1, s28, v1")
    g.e("v_lshrrev_b32 v2, 6, v0")
    g.e("s_lshr_b32 s29, s25, 1")
    g.e("s_lshl_b32 s29, s29, 9")
    g.e("s_and_b32 s32, s25, 1")
    g.e("s_lshl_b32 s32, s32, 6")
    g.e("s_add_u32 s29, s29, s32")
    g.e("s_add_u32 s29, s29, s27")
    g.e("v_lshl_add_u32 v3, v2, 3, s29")
    g.e("s_movk_i32 s33, 514")
    g.e("v_mul_lo_u32 v3, v3, s33")
    g.e("v_lshl_add_u32 v3, v1, 1, v3")
    for pp in range(2):
        for c2 in range(4):
            off = (32*pp + 128*c2)*514
            g.e(f"s_mov_b32 s34, {off}")
            g.e(f"buffer_load_ushort v{8+8*pp+c2}, v3, s[12:15], s34 offen")
            g.e(f"buffer_load_ushort v{12+8*pp+c2}, v3, s[16:19], s34 offen")
    g.e("v_lshlrev_b32 v4, 13, v1")
    g.e("s_lshl_b32 s35, s25, 10")
    g.e("s_lshl_b32 s36, s27, 7")
    g.e("s_add_u32 s35, s35, s36")
    g.e("v_add_u32 v4, s35, v4")
    g.e("v_lshl_add_u32 v4, v2, 4, v4")
    g.e("s_waitcnt vmcnt(0)")
    for pp in range(2):
        for c2 in range(4):
            g.e(f"v_lshl_or_b32 v{8+8*pp+c2}, v{12+8*pp+c2}, 16, v{8+8*pp+c2}")
    g.e(f"buffer_store_dwordx4 v[8:11], v4, s[20:23], 0 offen{SCS}")
    g.e(f"buffer_store_dwordx4 v[16:19], v4, s[20:23], 0 offen offset:64{SCS}")

def task_wab(g):
    g.e("s_cmp_lt_u32 s2, 248")
    g.e("s_cbranch_scc1 wab_end")
    g.e("s_load_dwordx4 s[8:11], s[0:1], 8")
    g.e("s_waitcnt lgkmcnt(0)")
    srd(g, 12, 8, 0, 2048*514)
    srd(g, 16, 10, 0, 2048*514)
    srd(g, 20, 4, WS_WAB, 2048*16)
    g.e("s_sub_u32 s24, s2, 248")
    g.e("s_lshr_b32 s25, s24, 1")
    g.e("s_lshl_b32 s25, s25, 9")
    g.e("s_and_b32 s26, s24, 1")
    g.e("s_lshl_b32 s26, s26, 6")
    g.e("s_add_u32 s25, s25, s26")
    g.e("v_lshrrev_b32 v1, 5, v0")
    g.e("v_bfe_u32 v2, v0, 2, 3")
    g.e("v_and_b32 v3, 3, v0")
    g.e("v_lshl_add_u32 v4, v2, 3, v1")
    g.e("v_lshl_add_u32 v4, v3, 7, v4")
    g.e("s_movk_i32 s33, 514")
    g.e("v_lshlrev_b32 v9, 4, v0")
    g.e("v_add_u32 v5, s25, v4")
    g.e("v_sub_u32 v6, 2048, v5")
    g.e("v_and_b32 v6, 2047, v6")
    g.e("v_mul_lo_u32 v7, v5, s33")
    g.e("v_mul_lo_u32 v8, v6, s33")
    g.e("buffer_load_ushort v16, v7, s[12:15], 0 offen")
    g.e("buffer_load_ushort v17, v7, s[16:19], 0 offen")
    g.e("buffer_load_ushort v18, v7, s[12:15], 0 offen offset:512")
    g.e("buffer_load_ushort v19, v7, s[16:19], 0 offen offset:512")
    g.e("buffer_load_ushort v20, v8, s[12:15], 0 offen")
    g.e("buffer_load_ushort v21, v8, s[16:19], 0 offen")
    g.e("buffer_load_ushort v22, v8, s[12:15], 0 offen offset:512")
    g.e("buffer_load_ushort v23, v8, s[16:19], 0 offen offset:512")
    g.e("s_lshl_b32 s37, s24, 12")
    g.e("s_waitcnt vmcnt(0)")
    for r in range(16, 24):
        g.e(f"v_lshlrev_b32 v{r}, 16, v{r}")
    g.e("v_add_f32 v24, v16, v20")
    g.e("v_sub_f32 v25, v17, v21")
    g.e("v_add_f32 v26, v18, v22")
    g.e("v_sub_f32 v27, v19, v23")
    g.e("v_add_f32 v28, v24, v26")
    g.e("v_add_f32 v29, v25, v27")
    g.e("v_sub_f32 v30, v24, v26")
    g.e("v_sub_f32 v31, v25, v27")
    for r in range(28, 32):
        g.e(f"v_mul_f32 v{r}, 0.25, v{r}")
    g.e(f"buffer_store_dwordx4 v[28:31], v9, s[20:23], s37 offen{SCS}")
    g.lab("wab_end")

XR1 = [240+j for j in range(8)]
def l1_prefetch(g):
    g.e("s_load_dwordx2 s[6:7], s[0:1], 0")
    g.e("v_and_b32 v1, 31, v0")
    g.e("v_lshrrev_b32 v2, 5, v0")
    g.e("s_lshl_b32 s3, s2, 13")
    g.e("v_lshl_add_u32 v3, v2, 10, s3")
    g.e("v_lshl_add_u32 v3, v1, 2, v3")
    g.e("s_waitcnt lgkmcnt(0)")
    srd(g, 8, 6, 0, 2048*1024)
    for j in range(8):
        g.e(f"buffer_load_dword v{XR1[j]}, v3, s[8:11], 0 offen offset:{128*j}")

def phase_l1(g):
    set_k(g)
    g.e("v_and_b32 v1, 31, v0")
    g.e("v_lshrrev_b32 v2, 5, v0")
    g.e("v_lshlrev_b32 v4, 3, v1")
    srd(g, 12, 4, WS_MOD, 3072*4)
    srd(g, 16, 4, WS_XD, 256*16384)
    Z = [16+2*j for j in range(8)]
    T = [32, 34, 36, 38]
    SCm = [48+2*j for j in range(8)]
    SH = [64+2*j for j in range(8)]
    TW1 = [80+2*j for j in range(7)]
    TW2 = [94+2*j for j in range(7)]
    TWS = [108+2*j for j in range(4)]
    g.e("v_cvt_f32_u32 v5, v1")
    g.e(f"v_mul_f32 v5, 0x{f2u(1/256):08x}, v5")
    gen_tw(g, TW1, 5, range(1, 8), 6)
    g.e("v_and_b32 v7, 3, v0")
    g.e("v_cvt_f32_u32 v5, v7")
    g.e(f"v_mul_f32 v5, 0x{f2u(1/32):08x}, v5")
    gen_tw(g, TW2, 5, range(1, 8), 6)
    g.e("v_lshrrev_b32 v8, 3, v0")
    g.e("v_cvt_f32_u32 v5, v8")
    g.e(f"v_mul_f32 v5, 0x{f2u(1/512):08x}, v5")
    for q in range(4):
        g.e(f"v_add_f32 v6, 0x{f2u(q/8):08x}, v5")
        g.e(f"v_cos_f32 v{TWS[q]}, v6")
        g.e(f"v_sin_f32 v{TWS[q]+1}, -v6")
    g.e("v_mul_u32_u24 v9, 2304, v2")
    g.e("v_lshl_add_u32 v10, v1, 3, v9")
    g.e("v_bfe_u32 v11, v0, 2, 3")
    g.e("v_mul_u32_u24 v12, 288, v11")
    g.e("v_add_u32 v12, v12, v9")
    g.e("v_lshl_add_u32 v12, v7, 3, v12")
    g.e(f"v_mul_u32_u24 v13, {F_RS}, v2")
    g.e("v_lshl_add_u32 v13, v11, 5, v13")
    g.e("v_lshl_add_u32 v13, v7, 3, v13")
    g.e(f"v_add_u32 v13, {LDS_F}, v13")
    g.e("s_waitcnt vmcnt(0)")
    for j in range(8):
        g.e(f"v_lshlrev_b32 v{Z[j]}, 16, v{XR1[j]}")
        g.e(f"v_and_b32 v{Z[j]+1}, 0xffff0000, v{XR1[j]}")
    wait(g, 1, "a")
    for j in range(8):
        g.e(f"buffer_load_dwordx2 {P(SH[j])}, v4, s[12:15], 0 offen offset:{256*j}{SC}")
        g.e(f"buffer_load_dwordx2 {P(SCm[j])}, v4, s[12:15], 0 offen offset:{2048+256*j}{SC}")
    g.e("s_waitcnt vmcnt(0)")
    ln_mod(g, Z, SCm, SH, 120, 121, 122, 123, 124)
    y, free = dft8(g, Z, T, -1, KS)
    for r in range(1, 8):
        cmul(g, y[r], y[r], TW1[r-1], free[0])
    for r in range(8):
        g.e(f"ds_write_b64 v10, {P(y[r])} offset:{288*r}")
    allr = y + free
    x = allr[:8]; T2 = allr[8:]
    for t1 in range(8):
        g.e(f"ds_read_b64 {P(x[t1])}, v12 offset:{32*t1}")
    g.e("s_waitcnt lgkmcnt(0)")
    y, free = dft8(g, x, T2, -1, KS)
    for p in range(1, 8):
        cmul(g, y[p], y[p], TW2[p-1], free[0])
    for p in range(8):
        g.e(f"ds_write_b64 v13, {P(y[p])} offset:{256*p}")
    g.e("s_waitcnt lgkmcnt(0)")
    g.e("s_barrier")
    g.e("v_and_b32 v14, 7, v0")
    g.e(f"v_mul_u32_u24 v15, {F_RS}, v14")
    g.e(f"v_add_u32 v15, {LDS_F}, v15")
    g.e("v_sub_u32 v9, 64, v8")
    g.e("v_cmp_eq_u32 vcc, 0, v8")
    g.e("v_mov_b32 v10, 32")
    g.e("s_nop 1")
    g.e("v_cndmask_b32 v9, v9, v10, vcc")
    g.e("v_lshl_add_u32 v10, v8, 5, v15")
    g.e("v_lshl_add_u32 v11, v9, 5, v15")
    A = [16, 18, 20, 22]; B = [24, 26, 28, 30]
    g.e("ds_read_b128 v[16:19], v10")
    g.e("ds_read_b128 v[20:23], v10 offset:16")
    g.e("ds_read_b128 v[24:27], v11")
    g.e("ds_read_b128 v[28:31], v11 offset:16")
    g.e("s_lshl_b32 s3, s2, 6")
    g.e("v_lshl_add_u32 v12, v14, 3, s3")
    g.e("v_lshl_add_u32 v13, v8, 14, v12")
    g.e("v_lshl_add_u32 v14, v9, 14, v12")
    for q in range(4):
        g.e(f"s_mov_b32 s{40+q}, 0x{q*64*16384:x}")
    g.e("s_waitcnt lgkmcnt(0)")
    ZA, fr = dft4(g, A, [32, 34], -1)
    ZB, fr2 = dft4(g, B, [36, 38], -1)
    E, D, Tt = 40, 42, 44
    g.e("s_mov_b64 s[50:51], exec")
    g.e("s_andn2_b64 exec, exec, vcc")
    for q in range(4):
        oa, ob = 46+4*q, 48+4*q
        split_pair(g, ZA[q], ZB[3-q], P(TWS[q]), E, D, Tt, oa, ob)
        g.e(f"buffer_store_dwordx2 {P(oa)}, v13, s[16:19], s{40+q} offen{SCS}")
        g.e(f"buffer_store_dwordx2 {P(ob)}, v14, s[16:19], s{40+3-q} offen{SCS}")
    g.e("s_and_b64 exec, s[50:51], vcc")
    g.e("s_cbranch_execz l1_nospecial")
    pairs = [(ZA[0], ZA[0], 0, 256), (ZA[1], ZA[3], 64, 192), (ZA[2], ZA[2], 128, None),
             (ZB[0], ZB[3], 32, 224), (ZB[1], ZB[2], 96, 160)]
    for n, (a, b, k, k2) in enumerate(pairs):
        oa, ob = 64+4*n, 66+4*n
        const_tw(g, 52, k, 512)
        split_pair(g, a, b, "s[52:53]", E, D, Tt, oa, ob)
        if k == 0:
            g.e(f"v_mov_b32 v{oa+1}, v{ob}")
            g.e(f"buffer_store_dwordx2 {P(oa)}, v12, s[16:19], 0 offen{SCS}")
            continue
        g.e(f"s_mov_b32 s54, 0x{k*16384:x}")
        g.e(f"buffer_store_dwordx2 {P(oa)}, v12, s[16:19], s54 offen{SCS}")
        if k2 is not None:
            g.e(f"s_mov_b32 s54, 0x{k2*16384:x}")
            g.e(f"buffer_store_dwordx2 {P(ob)}, v12, s[16:19], s54 offen{SCS}")
    g.lab("l1_nospecial")
    g.e("s_mov_b64 exec, s[50:51]")

def phase_l2(g):
    set_k(g)
    g.e("s_lshl_b32 s3, s2, 14")
    g.e("v_lshl_add_u32 v1, v0, 3, s3")
    g.e("s_lshl_b32 s3, s2, 13")
    g.e("v_lshl_add_u32 v2, v0, 2, s3")
    srd(g, 8, 4, WS_XD, 256*16384)
    srd(g, 12, 4, WS_WT, 256*8192)
    srd(g, 20, 4, WS_ZS, 256*16384)
    srd(g, 24, 4, WS_WAB, 2048*16)
    Z = [16+2*j for j in range(8)]
    T = [32, 34, 36, 38]
    WR = [40+j for j in range(8)]
    TW1 = [48+2*j for j in range(7)]
    TW2 = [62+2*j for j in range(7)]
    TW3 = [76+2*j for j in range(7)]
    g.e("s_movk_i32 s17, 4096")
    g.e("v_cvt_f32_u32 v5, v0")
    g.e(f"v_mul_f32 v5, 0x{f2u(1/2048):08x}, v5")
    gen_tw(g, TW1, 5, range(1, 8), 6)
    g.e("v_and_b32 v7, 31, v0")
    g.e("v_cvt_f32_u32 v5, v7")
    g.e(f"v_mul_f32 v5, 0x{f2u(1/256):08x}, v5")
    gen_tw(g, TW2, 5, range(1, 8), 6)
    g.e("v_and_b32 v8, 3, v0")
    g.e("v_cvt_f32_u32 v5, v8")
    g.e(f"v_mul_f32 v5, 0x{f2u(1/32):08x}, v5")
    gen_tw(g, TW3, 5, range(1, 8), 6)
    g.e("v_lshlrev_b32 v9, 3, v0")
    g.e("v_lshrrev_b32 v10, 5, v0")
    g.e("v_lshlrev_b32 v11, 11, v10")
    g.e("v_lshl_add_u32 v11, v7, 3, v11")
    g.e("v_mul_u32_u24 v12, 2304, v10")
    g.e("v_add_u32 v12, 16384, v12")
    g.e("v_lshl_add_u32 v13, v7, 3, v12")
    g.e("v_bfe_u32 v14, v0, 2, 3")
    g.e("v_mul_u32_u24 v14, 288, v14")
    g.e("v_add_u32 v14, v14, v12")
    g.e("v_lshl_add_u32 v15, v8, 6, v14")
    g.e("v_lshl_add_u32 v14, v8, 3, v14")
    wait(g, 2, "b")
    rank_resolve(g)
    for j in range(8):
        if j < 2:
            g.e(f"buffer_load_dwordx2 {P(Z[j])}, v1, s[8:11], 0 offen offset:{2048*j}{SC}")
        else:
            g.e(f"s_movk_i32 s19, {2048*j}")
            g.e(f"buffer_load_dwordx2 {P(Z[j])}, v1, s[8:11], s19 offen{SC}")
    for i in range(8):
        if i < 4:
            g.e(f"buffer_load_dword v{WR[i]}, v2, s[12:15], 0 offen offset:{1024*i}{SC}")
        else:
            g.e(f"buffer_load_dword v{WR[i]}, v2, s[12:15], s17 offen offset:{1024*(i-4)}{SC}")
    g.e("s_cmp_lg_u32 s2, 0")
    g.e("s_cbranch_scc1 l2_nowab")
    g.e("v_lshlrev_b32 v3, 4, v0")
    for i in range(8):
        g.e(f"s_movk_i32 s19, {4096*i}")
        g.e(f"buffer_load_dwordx4 v[{128+4*i}:{131+4*i}], v3, s[24:27], s19 offen{SC}")
    g.e("s_waitcnt vmcnt(16)")
    g.e("s_branch l2_go")
    g.lab("l2_nowab")
    g.e("s_waitcnt vmcnt(8)")
    g.lab("l2_go")
    y, free = dft8(g, Z, T, -1, KS)
    for r in range(1, 8):
        cmul(g, y[r], y[r], TW1[r-1], free[0])
    for r in range(8):
        g.e(f"ds_write_b64 v9, {P(y[r])} offset:{2048*r}")
    g.e("s_waitcnt lgkmcnt(0)")
    g.e("s_barrier")
    allr = y + free; x = allr[:8]; T2 = allr[8:]
    for t1 in range(8):
        g.e(f"ds_read_b64 {P(x[t1])}, v11 offset:{256*t1}")
    g.e("s_waitcnt lgkmcnt(0)")
    y, free = dft8(g, x, T2, -1, KS)
    for p in range(1, 8):
        cmul(g, y[p], y[p], TW2[p-1], free[0])
    for p in range(8):
        g.e(f"ds_write_b64 v13, {P(y[p])} offset:{288*p}")
    allr = y + free; x = allr[:8]; T2 = allr[8:]
    for b in range(8):
        g.e(f"ds_read_b64 {P(x[b])}, v14 offset:{32*b}")
    g.e("s_waitcnt lgkmcnt(0)")
    y, free = dft8(g, x, T2, -1, KS)
    for c in range(1, 8):
        cmul(g, y[c], y[c], TW3[c-1], free[0])
    for c in range(8):
        g.e(f"ds_write_b64 v14, {P(y[c])} offset:{32*c}")
    g.e("s_waitcnt lgkmcnt(0)")
    for i in range(4):
        g.e(f"ds_read_b128 v[{16+4*i}:{19+4*i}], v15 offset:{16*i}")
    g.e("s_waitcnt lgkmcnt(0)")
    Y0, f0 = dft4(g, [16, 18, 20, 22], [32, 34], -1)
    Y1, f1 = dft4(g, [24, 26, 28, 30], [36, 38], -1)
    g.e("s_waitcnt vmcnt(0)")
    tw = 90; tt = 92
    g.e("s_cmp_eq_u32 s2, 0")
    g.e("s_cbranch_scc1 l2_col0")
    for q in range(4):
        for e, Y in ((0, Y0), (1, Y1)):
            wr = WR[q*2+e]
            g.e(f"v_lshlrev_b32 v{tw}, 16, v{wr}")
            g.e(f"v_and_b32 v{tw+1}, 0xffff0000, v{wr}")
            cmul(g, Y[q], Y[q], tw, tt)
    g.e("s_branch l2_inv")
    g.lab("l2_col0")
    g.e("v_lshrrev_b32 v3, 5, v0")
    g.e("v_bfe_u32 v4, v0, 2, 3")
    g.e("v_lshl_add_u32 v3, v4, 3, v3")
    g.e("v_lshl_add_u32 v3, v8, 7, v3")
    g.e(f"v_lshlrev_b32 v4, 3, v3")
    g.e(f"v_add_u32 v4, {LDS_MIR}, v4")
    for q in range(4):
        for e, Y in ((0, Y0), (1, Y1)):
            g.e(f"ds_write_b64 v4, {P(Y[q])} offset:{(512*q+64*e)*8}")
    g.e("s_waitcnt lgkmcnt(0)")
    g.e("s_barrier")
    for q in range(4):
        for e, Y in ((0, Y0), (1, Y1)):
            i = q*2+e
            g.e(f"v_add_u32 v5, {512*q+64*e}, v3")
            g.e("v_sub_u32 v5, 2048, v5")
            g.e("v_and_b32 v5, 2047, v5")
            g.e("v_lshlrev_b32 v5, 3, v5")
            g.e(f"v_add_u32 v5, {LDS_MIR}, v5")
            g.e(f"ds_read_b64 {P(96+2*i)}, v5")
    g.e("s_waitcnt lgkmcnt(0)")
    for q in range(4):
        for e, Y in ((0, Y0), (1, Y1)):
            i = q*2+e
            wa, wb = 128+4*i, 130+4*i
            m = 96+2*i
            cmul(g, Y[q], Y[q], wa, tt)
            g.e(f"v_pk_mul_f32 {P(tt)}, {P(m)}, {P(wb)} op_sel:[0,0] op_sel_hi:[1,0] neg_hi:[1,0]")
            g.e(f"v_pk_fma_f32 {P(tt)}, {P(m)}, {P(wb)}, {P(tt)} op_sel:[1,1,0] op_sel_hi:[0,1,1]")
            cadd(g, Y[q], Y[q], tt)
    g.lab("l2_inv")
    A0, f0 = dft4(g, Y0, f0, +1)
    A1, f1 = dft4(g, Y1, f1, +1)
    for a in range(4):
        g.e(f"ds_write_b64 v15, {P(A0[a])} offset:{8*a}")
        g.e(f"ds_write_b64 v15, {P(A1[a])} offset:{32+8*a}")
    x = Z; T2 = T
    for c in range(8):
        g.e(f"ds_read_b64 {P(x[c])}, v14 offset:{32*c}")
    g.e("s_waitcnt lgkmcnt(0)")
    for c in range(1, 8):
        cmul(g, x[c], x[c], TW3[c-1], T2[0], conj=True)
    y, free = dft8(g, x, T2, +1, KS)
    for b in range(8):
        g.e(f"ds_write_b64 v14, {P(y[b])} offset:{32*b}")
    allr = y + free; x = allr[:8]; T2 = allr[8:]
    for p in range(8):
        g.e(f"ds_read_b64 {P(x[p])}, v13 offset:{288*p}")
    g.e("s_waitcnt lgkmcnt(0)")
    for p in range(1, 8):
        cmul(g, x[p], x[p], TW2[p-1], T2[0], conj=True)
    y, free = dft8(g, x, T2, +1, KS)
    for t1 in range(8):
        g.e(f"ds_write_b64 v11, {P(y[t1])} offset:{256*t1}")
    g.e("s_waitcnt lgkmcnt(0)")
    g.e("s_barrier")
    allr = y + free; x = allr[:8]; T2 = allr[8:]
    for r in range(8):
        g.e(f"ds_read_b64 {P(x[r])}, v9 offset:{2048*r}")
    g.e("s_waitcnt lgkmcnt(0)")
    for r in range(1, 8):
        cmul(g, x[r], x[r], TW1[r-1], T2[0], conj=True)
    y, free = dft8(g, x, T2, +1, KS)
    for j in range(8):
        if j < 2:
            g.e(f"buffer_store_dwordx2 {P(y[j])}, v1, s[20:23], 0 offen offset:{2048*j}{SCS}")
        else:
            g.e(f"s_movk_i32 s19, {2048*j}")
            g.e(f"buffer_store_dwordx2 {P(y[j])}, v1, s[20:23], s19 offen{SCS}")

def phase_l3(g):
    lid_read(g)
    set_k(g)
    g.e("s_load_dwordx2 s[6:7], s[0:1], 0")
    g.e("v_and_b32 v1, 31, v0")
    g.e("v_lshrrev_b32 v2, 5, v0")
    g.e("v_lshrrev_b32 v8, 3, v0")
    g.e("v_and_b32 v14, 7, v0")
    g.e("v_sub_u32 v9, 64, v8")
    g.e("v_cmp_eq_u32 vcc, 0, v8")
    g.e("v_mov_b32 v10, 32")
    g.e("s_nop 1")
    g.e("v_cndmask_b32 v9, v9, v10, vcc")
    g.e("s_mov_b64 s[56:57], vcc")
    g.e("s_lshl_b32 s3, s71, 6")
    g.e("v_lshl_add_u32 v12, v14, 3, s3")
    g.e("v_lshl_add_u32 v13, v8, 14, v12")
    g.e("v_lshl_add_u32 v11, v9, 14, v12")
    for q in range(4):
        g.e(f"s_mov_b32 s{40+q}, 0x{q*64*16384:x}")
    g.e("s_waitcnt lgkmcnt(0)")
    srd(g, 8, 6, 0, 2048*1024)
    srd(g, 12, 4, WS_MOD, 3072*4)
    srd(g, 16, 4, WS_ZS, 256*16384)
    srd(g, 20, 4, WS_X1, 2048*1024)
    srd(g, 24, 4, WS_H2, 2048*1024)
    XA = [16, 18, 20, 22]; XB = [24, 26, 28, 30]; XN = 32
    g.e("s_lshl_b32 s3, s71, 13")
    g.e("v_lshl_add_u32 v3, v2, 10, s3")
    g.e("v_lshl_add_u32 v3, v1, 2, v3")
    g.e("v_lshlrev_b32 v4, 3, v1")
    XR = [40+j for j in range(8)]
    SCm = [48+2*j for j in range(8)]
    SH = [64+2*j for j in range(8)]
    GA = [128+2*j for j in range(8)]
    TW1 = [80+2*j for j in range(7)]
    TW2 = [94+2*j for j in range(7)]
    TWS = [108+2*j for j in range(4)]
    for j in range(8):
        g.e(f"buffer_load_dword v{XR[j]}, v3, s[8:11], 0 offen offset:{128*j}")
    g.e("s_movk_i32 s45, 4096")
    g.e("s_movk_i32 s46, 8192")
    for j in range(8):
        g.e(f"buffer_load_dwordx2 {P(GA[j])}, v4, s[12:15], s45 offen offset:{256*j}{SC}")
        g.e(f"buffer_load_dwordx2 {P(SH[j])}, v4, s[12:15], s45 offen offset:{2048+256*j}{SC}")
        g.e(f"buffer_load_dwordx2 {P(SCm[j])}, v4, s[12:15], s46 offen offset:{256*j}{SC}")
    g.e("v_cvt_f32_u32 v5, v1")
    g.e(f"v_mul_f32 v5, 0x{f2u(1/256):08x}, v5")
    gen_tw(g, TW1, 5, range(1, 8), 6)
    g.e("v_and_b32 v7, 3, v0")
    g.e("v_cvt_f32_u32 v5, v7")
    g.e(f"v_mul_f32 v5, 0x{f2u(1/32):08x}, v5")
    gen_tw(g, TW2, 5, range(1, 8), 6)
    g.e("v_cvt_f32_u32 v5, v8")
    g.e(f"v_mul_f32 v5, 0x{f2u(1/512):08x}, v5")
    for q in range(4):
        g.e(f"v_add_f32 v6, 0x{f2u(q/8):08x}, v5")
        g.e(f"v_cos_f32 v{TWS[q]}, v6")
        g.e(f"v_sin_f32 v{TWS[q]+1}, -v6")
    g.e(f"v_mul_u32_u24 v15, {F_RS}, v14")
    g.e(f"v_add_u32 v15, {LDS_F}, v15")
    g.e("v_lshl_add_u32 v10, v8, 5, v15")
    g.e("v_lshl_add_u32 v15, v9, 5, v15")
    E, D, Tt = 34, 36, 38
    ZA = [144, 146, 148, 150]; ZB = [152, 154, 156, 158]
    g.e("s_waitcnt vmcnt(0)")
    wait(g, 3, "c")
    for q in range(4):
        g.e(f"buffer_load_dwordx2 {P(XA[q])}, v13, s[16:19], s{40+q} offen{SC}")
        g.e(f"buffer_load_dwordx2 {P(XB[q])}, v11, s[16:19], s{40+q} offen{SC}")
    g.e("s_waitcnt vmcnt(0)")
    g.e("s_mov_b64 vcc, s[56:57]")
    g.e("s_mov_b64 s[50:51], exec")
    g.e("s_andn2_b64 exec, exec, vcc")
    for q in range(4):
        merge_pair(g, XA[q], XB[3-q], P(TWS[q]), E, D, Tt, ZA[q], ZB[3-q])
    g.e("s_and_b64 exec, s[50:51], vcc")
    g.e("s_cbranch_execz l3_nospecial")
    g.e(f"v_mov_b32 v{XN}, v{XA[0]+1}")
    g.e(f"v_mov_b32 v{XA[0]+1}, 0")
    g.e(f"v_mov_b32 v{XN+1}, 0")
    pairs = [(XA[0], XN, 0, ZA[0], 160), (XA[1], XA[3], 64, ZA[1], ZA[3]), (XA[2], XA[2], 128, ZA[2], 160),
             (XB[0], XB[3], 32, ZB[0], ZB[3]), (XB[1], XB[2], 96, ZB[1], ZB[2])]
    for (a, b, k, oa, ob) in pairs:
        const_tw(g, 52, k, 512)
        merge_pair(g, a, b, "s[52:53]", E, D, Tt, oa, ob)
    g.lab("l3_nospecial")
    g.e("s_mov_b64 exec, s[50:51]")
    YA, f0 = dft4(g, ZA, [16, 18], +1)
    YB, f1 = dft4(g, ZB, [20, 22], +1)
    for t0 in range(4):
        g.e(f"ds_write_b64 v10, {P(YA[t0])} offset:{8*t0}")
        g.e(f"ds_write_b64 v15, {P(YB[t0])} offset:{8*t0}")
    g.e("s_waitcnt lgkmcnt(0)")
    g.e("s_barrier")
    g.e("v_bfe_u32 v11, v0, 2, 3")
    g.e(f"v_mul_u32_u24 v13, {F_RS}, v2")
    g.e("v_lshl_add_u32 v13, v11, 5, v13")
    g.e("v_lshl_add_u32 v13, v7, 3, v13")
    g.e(f"v_add_u32 v13, {LDS_F}, v13")
    Z = [16+2*j for j in range(8)]; T = [32, 34, 36, 38]
    for p in range(8):
        g.e(f"ds_read_b64 {P(Z[p])}, v13 offset:{256*p}")
    g.e("v_mul_u32_u24 v9, 2304, v2")
    g.e("v_lshl_add_u32 v10, v1, 3, v9")
    g.e("v_mul_u32_u24 v12, 288, v11")
    g.e("v_add_u32 v12, v12, v9")
    g.e("v_lshl_add_u32 v12, v7, 3, v12")
    g.e("s_waitcnt lgkmcnt(0)")
    for p in range(1, 8):
        cmul(g, Z[p], Z[p], TW2[p-1], T[0], conj=True)
    y, free = dft8(g, Z, T, +1, KS)
    for t1 in range(8):
        g.e(f"ds_write_b64 v12, {P(y[t1])} offset:{32*t1}")
    allr = y + free; x = allr[:8]; T2 = allr[8:]
    for r in range(8):
        g.e(f"ds_read_b64 {P(x[r])}, v10 offset:{288*r}")
    g.e("s_waitcnt lgkmcnt(0)")
    for r in range(1, 8):
        cmul(g, x[r], x[r], TW1[r-1], T2[0], conj=True)
    y, free = dft8(g, x, T2, +1, KS)
    g.e(f"s_mov_b32 s62, 0x{f2u(2.0**-21):08x}")
    g.e(f"s_mov_b32 s63, 0x{f2u(2.0**-21):08x}")
    tp = 124
    g.e("v_mul_u32_u24 v13, 1040, v2")
    g.e("v_lshl_add_u32 v13, v1, 2, v13")
    g.e("v_add_u32 v13, 40960, v13")
    for j in range(8):
        r = y[j]
        g.e(f"v_pk_mul_f32 {P(r)}, {P(r)}, s[62:63]")
        round_pair(g, r, tp)
        g.e(f"v_pk_mul_f32 {P(r)}, {P(r)}, {P(GA[j])}")
        round_pair(g, r, tp)
        g.e(f"v_lshlrev_b32 v{tp+2}, 16, v{XR[j]}")
        g.e(f"v_and_b32 v{tp+3}, 0xffff0000, v{XR[j]}")
        g.e(f"v_pk_add_f32 {P(r)}, {P(r)}, {P(tp+2)}")
        round_pair(g, r, tp)
        g.e(f"ds_write_b32 v13, v{tp} offset:{128*j}")
    ln_mod(g, y, SCm, SH, 120, 121, 122, 123, 124)
    for j in range(8):
        g.e(f"v_cvt_pk_bf16_f32 v{XR[j]}, v{y[j]}, v{y[j]+1}")
        g.e(f"ds_write_b32 v13, v{XR[j]} offset:{8320+128*j}")
    g.e("s_waitcnt lgkmcnt(0)")
    g.e("s_barrier")
    g.e("v_and_b32 v14, 7, v0")
    g.e("v_lshrrev_b32 v8, 3, v0")
    g.e("v_mul_u32_u24 v13, 1040, v14")
    g.e("v_lshl_add_u32 v13, v8, 4, v13")
    g.e("v_add_u32 v13, 40960, v13")
    g.e("ds_read_b128 v[16:19], v13")
    g.e("ds_read_b128 v[20:23], v13 offset:512")
    g.e("ds_read_b128 v[24:27], v13 offset:8320")
    g.e("ds_read_b128 v[28:31], v13 offset:8832")
    g.e("s_lshl_b32 s3, s71, 13")
    g.e("v_lshl_add_u32 v10, v14, 10, s3")
    g.e("v_lshl_add_u32 v10, v8, 4, v10")
    g.e("s_lshr_b32 s3, s71, 1")
    g.e("s_lshl_b32 s3, s3, 14")
    g.e("s_and_b32 s47, s71, 1")
    g.e("s_lshl_b32 s47, s47, 7")
    g.e("s_add_u32 s3, s3, s47")
    g.e("v_lshl_add_u32 v11, v8, 8, s3")
    g.e("v_lshl_add_u32 v11, v14, 4, v11")
    g.e("s_movk_i32 s47, 8192")
    g.e("s_waitcnt lgkmcnt(0)")
    st_dual(g, "buffer_store_dwordx4 v[16:19], v10, s[20:23], 0 offen")
    st_dual(g, "buffer_store_dwordx4 v[20:23], v10, s[20:23], 0 offen offset:512")
    st_dual(g, "buffer_store_dwordx4 v[24:27], v11, s[24:27], 0 offen")
    st_dual(g, "buffer_store_dwordx4 v[28:31], v11, s[24:27], s47 offen")

def g1_prefetch(g):
    g.e("s_bfe_u32 s20, s71, 0x40001")
    g.e("v_and_b32 v2, 63, v0")
    srd(g, 12, 4, WS_W1P, 16*16*7*1024)
    g.e("v_lshlrev_b32 v7, 4, v2")
    g.e("s_mul_i32 s25, s20, 114688")
    g.e("s_lshl_b32 s26, s95, 10")
    g.e("s_add_u32 s25, s25, s26")
    g.e("s_mov_b32 s27, s26")
    for i in range(14):
        g.e("s_mov_b32 m0, s27")
        g.e("s_add_u32 s27, s27, 8192")
        g.e(f"buffer_load_dwordx4 v7, s[12:15], s25 offen lds")
        g.e("s_add_u32 s25, s25, 8192")

def phase_g1(g):
    g.e("s_lshr_b32 s21, s71, 5")
    g.e("s_lshl_b32 s21, s21, 1")
    g.e("s_and_b32 s20, s71, 1")
    g.e("s_add_u32 s21, s21, s20")
    g.e("s_bfe_u32 s20, s71, 0x40001")
    g.e("s_and_b32 s22, s95, 3")
    g.e("s_lshr_b32 s34, s95, 2")
    g.e("v_and_b32 v2, 63, v0")
    g.e("v_and_b32 v3, 15, v0")
    g.e("v_bfe_u32 v4, v0, 4, 2")
    srd(g, 8, 4, WS_H2, 2048*1024)
    srd(g, 16, 4, WS_HID, 128*56*1024)
    g.e("s_lshl_b32 s23, s21, 3")
    g.e("s_lshl_b32 s24, s22, 1")
    g.e("s_add_u32 s23, s23, s24")
    g.e("s_lshl_b32 s23, s23, 14")
    g.e("v_lshl_add_u32 v5, v2, 4, s23")
    g.e("v_add_u32 v6, 16384, v5")
    g.e("v_lshlrev_b32 v7, 4, v2")
    g.e("s_lshl_b32 s35, s34, 12")
    g.e("v_add_u32 v7, s35, v7")
    g.e("v_add_u32 v8, 57344, v7")
    HB = [[64 + (mf*16+ks)*4 for ks in range(16)] for mf in range(2)]
    ACC = [[224 + (mf*4+nf)*4 for nf in range(4)] for mf in range(2)]
    ACC = [[192 + (mf*4+nf)*4 for nf in range(4)] for mf in range(2)]
    for i in range(32):
        g.e(f"v_mov_b32 v{192+i}, 0")
    g.e("v_lshrrev_b32 v9, 1, v4")
    g.e("v_lshlrev_b32 v9, 8, v9")
    g.e("v_lshl_add_u32 v9, v3, 4, v9")
    g.e("v_and_b32 v10, 1, v4")
    g.e("v_mul_u32_u24 v10, 57344, v10")
    g.e("v_add_u32 v9, v9, v10")
    g.e("s_lshl_b32 s28, s21, 3")
    g.e("s_lshl_b32 s29, s22, 1")
    g.e("s_add_u32 s28, s28, s29")
    g.e("s_mul_i32 s28, s28, 57344")
    g.e("s_mul_i32 s30, s20, 7")
    g.e("s_lshl_b32 s29, s34, 2")
    g.e("s_add_u32 s30, s30, s29")
    g.e(f"s_mov_b32 s40, 0x{f2u(-math.log2(math.e)):08x}")
    g.e(f"s_mov_b32 s41, 0x{f2u(-math.log2(math.e)):08x}")
    g.e("s_movk_i32 s45, 4096")
    g.e("s_movk_i32 s46, 8192")
    g.e("s_movk_i32 s47, 12288")
    g.e("s_mov_b32 s42, 1.0")
    g.e("s_mov_b32 s43, 1.0")
    g.e("s_waitcnt vmcnt(0)")
    wait(g, 4, "d")
    for ks in range(16):
        so = "0" if ks < 4 else f"s{44+ks//4}"
        g.e(f"buffer_load_dwordx4 v[{HB[0][ks]}:{HB[0][ks]+3}], v5, s[8:11], {so} offen offset:{1024*(ks%4)}")
        g.e(f"buffer_load_dwordx4 v[{HB[1][ks]}:{HB[1][ks]+3}], v6, s[8:11], {so} offen offset:{1024*(ks%4)}")
    if PROFILE:
        g.e("s_waitcnt vmcnt(0)")
        g.e("s_memrealtime s[88:89]")
        g.e("s_waitcnt lgkmcnt(0)")
        g.e("v_writelane_b32 v248, s88, 19")
    def epi(nf):
        L = []
        for mf in range(2):
            a = ACC[mf][nf]
            o = 16 + 8*mf
            for h in (0, 2):
                L.append(f"v_cvt_pk_bf16_f32 v{o+4}, v{a+h}, v{a+h+1}")
                L.append(f"v_lshlrev_b32 v{o+h}, 16, v{o+4}")
                L.append(f"v_and_b32 v{o+h+1}, 0xffff0000, v{o+4}")
            L.append(f"v_pk_mul_f32 {P(o+4)}, {P(o)}, s[40:41]")
            L.append(f"v_pk_mul_f32 {P(o+6)}, {P(o+2)}, s[40:41]")
            for i in range(4):
                L.append(f"v_exp_f32 v{o+4+i}, v{o+4+i}")
            L.append(f"v_pk_add_f32 {P(o+4)}, {P(o+4)}, s[42:43]")
            L.append(f"v_pk_add_f32 {P(o+6)}, {P(o+6)}, s[42:43]")
            for i in range(4):
                L.append(f"v_rcp_f32 v{o+4+i}, v{o+4+i}")
            L.append(f"v_pk_mul_f32 {P(o)}, {P(o)}, {P(o+4)}")
            L.append(f"v_pk_mul_f32 {P(o+2)}, {P(o+2)}, {P(o+6)}")
            L.append(f"v_cvt_pk_bf16_f32 v{12+2*mf}, v{o}, v{o+1}")
            L.append(f"v_cvt_pk_bf16_f32 v{13+2*mf}, v{o+2}, v{o+3}")
        L.append(f"s_add_u32 s31, s30, {nf}")
        L.append("s_lshr_b32 s32, s31, 1")
        L.append("s_lshl_b32 s32, s32, 10")
        L.append("s_and_b32 s33, s31, 1")
        L.append("s_lshl_b32 s33, s33, 9")
        L.append("s_add_u32 s32, s32, s33")
        L.append("s_add_u32 s32, s32, s28")
        L.append("v_permlane16_swap_b32 v12, v14")
        L.append("v_permlane16_swap_b32 v13, v15")
        L.append("s_nop 0")
        L.append(("dual", "buffer_store_dwordx4 v[12:15], v9, s[16:19], s32 offen"))
        L.append("s_nop 1")
        return L
    def emit(l):
        if isinstance(l, tuple):
            st_dual(g, l[1])
        else:
            g.e(l)
    def body(NNF, tag, first):
        steps = [(nf, ks) for nf in range(NNF) for ks in range(16)]
        NS = len(steps); AH = 6
        def wr(si):
            return 224 + (si % 6)*4 if False else 40 + (si % 6)*4
        def rd(si):
            nf, ks = steps[si]
            base = "v7" if ks < 8 else "v8"
            off = (ks*7+nf)*1024 - (0 if ks < 8 else 57344)
            g.e(f"ds_read_b128 v[{wr(si)}:{wr(si)+3}], {base} offset:{off}")
        AH = 5
        for si in range(AH):
            rd(si)
        pend = []
        for si, (nf, ks) in enumerate(steps):
            if si + AH < NS:
                rd(si+AH)
            lg = min(AH, NS-1-si)
            if nf == 0:
                g.e(f"s_waitcnt vmcnt({2*(15-ks)}) lgkmcnt({lg})")
            else:
                g.e(f"s_waitcnt lgkmcnt({lg})")
            for mf in range(2):
                a = ACC[mf][nf]
                g.e(f"v_mfma_f32_16x16x32_bf16 v[{a}:{a+3}], v[{wr(si)}:{wr(si)+3}], v[{HB[mf][ks]}:{HB[mf][ks]+3}], v[{a}:{a+3}]")
            if ks == 15 and PROFILE:
                g.e("s_memrealtime s[88:89]")
                g.e("s_waitcnt lgkmcnt(0)")
                g.e(f"v_writelane_b32 v248, s88, {20+nf}")
            if ks == 4 and nf > 0:
                pend = epi(nf-1)
            for _ in range(5):
                if pend:
                    emit(pend.pop(0))
        while pend:
            emit(pend.pop(0))
        g.e("s_nop 15")
        for l in epi(NNF-1):
            emit(l)
    g.e("s_cmp_lg_u32 s34, 0")
    g.e("s_cbranch_scc1 g1_cg1")
    body(4, "a", True)
    g.e("s_branch g1_end")
    g.lab("g1_cg1")
    body(3, "b", False)
    g.lab("g1_end")

def wreg(ks, nf):
    return 80 + (ks*4+nf)*4

def g2_prefetch(g):
    g.e("s_load_dwordx2 s[6:7], s[0:1], 64")
    g.e("s_bfe_u32 s20, s71, 0x30002")
    g.e("s_lshr_b32 s21, s71, 5")
    g.e("s_lshl_b32 s21, s21, 2")
    g.e("s_and_b32 s22, s71, 3")
    g.e("s_add_u32 s21, s21, s22")
    g.e("v_and_b32 v2, 63, v0")
    g.e("v_and_b32 v3, 15, v0")
    g.e("v_bfe_u32 v4, v0, 4, 2")
    g.e("s_waitcnt lgkmcnt(0)")
    srd(g, 8, 4, WS_HID, 128*56*1024)
    srd(g, 12, 4, WS_W2P, 8*56*4*1024)
    srd(g, 16, 6, 0, 2048*1024)
    srd(g, 80, 4, WS_X1, 2048*1024)
    srd(g, 84, 4, WS_MOD, 3072*4)
    g.e("v_lshlrev_b32 v7, 4, v2")
    g.e("s_mul_i32 s23, s95, 7")
    g.e("s_mul_i32 s24, s20, 56")
    g.e("s_add_u32 s24, s24, s23")
    g.e("s_lshl_b32 s24, s24, 12")
    for mf in range(4):
        g.e(f"s_lshl_b32 s{32+mf}, s21, 2")
        g.e(f"s_add_u32 s{32+mf}, s{32+mf}, {mf}")
        g.e(f"s_mul_i32 s{32+mf}, s{32+mf}, 56")
        g.e(f"s_add_u32 s{32+mf}, s{32+mf}, s23")
        g.e(f"s_lshl_b32 s{32+mf}, s{32+mf}, 10")
    for ks in range(7):
        for nf in range(4):
            w = wreg(ks, nf)
            g.e(f"buffer_load_dwordx4 v[{w}:{w+3}], v7, s[12:15], s24 offen offset:{1024*nf}")
        g.e("s_add_u32 s24, s24, 4096")

def phase_g2(g):
    HD = 3
    def hreg(ks, mf):
        return 192 + ((ks % HD)*4+mf)*4
    for i in range(64):
        g.e(f"v_mov_b32 v{16+i}, 0")
    g.e("s_waitcnt vmcnt(0)")
    wait(g, 5, "e")
    def issue_h(ks):
        for mf in range(4):
            h = hreg(ks, mf)
            g.e(f"buffer_load_dwordx4 v[{h}:{h+3}], v7, s[8:11], s{32+mf} offen")
            g.e(f"s_add_u32 s{32+mf}, s{32+mf}, 1024")
    for ks in range(HD):
        issue_h(ks)
    for ks in range(7):
        after = min(7, ks+HD) - (ks+1)
        g.e(f"s_waitcnt vmcnt({4*after})")
        for mf in range(4):
            for nf in range(4):
                a = 16 + (mf*4+nf)*4
                w = wreg(ks, nf); h = hreg(ks, mf)
                g.e(f"v_mfma_f32_16x16x32_bf16 v[{a}:{a+3}], v[{w}:{w+3}], v[{h}:{h+3}], v[{a}:{a+3}]")
        if ks + HD < 7:
            issue_h(ks+HD)
    g.e("s_lshr_b32 s25, s95, 1")
    g.e("s_and_b32 s26, s95, 1")
    g.e("s_lshl_b32 s27, s20, 7")
    g.e("v_lshl_add_u32 v11, v4, 3, s27")
    g.e("s_lshl_b32 s31, s26, 6")
    g.e("v_add_u32 v11, s31, v11")
    g.e("v_lshlrev_b32 v12, 1, v11")
    g.e("s_movk_i32 s28, 10240")
    g.e("s_lshl_b32 s30, s21, 6")
    g.e("s_lshl_b32 s31, s25, 4")
    g.e("s_add_u32 s30, s30, s31")
    g.e("v_add_u32 v10, s30, v3")
    g.e("v_lshlrev_b32 v10, 10, v10")
    g.e("v_add_u32 v10, v10, v11")
    for nf in range(2):
        g.e(f"buffer_load_dwordx4 v[{80+4*nf}:{83+4*nf}], v12, s[84:87], s28 offen offset:{64*nf}")
        g.e(f"buffer_load_dwordx2 v[{88+2*nf}:{89+2*nf}], v10, s[80:83], 0 offen offset:{32*nf}")
    g.e("s_nop 7")
    g.e("s_lshl_b32 s29, s95, 14")
    g.e("v_add_u32 v8, s29, v7")
    for f in range(16):
        g.e(f"ds_write_b128 v8, v[{16+4*f}:{19+4*f}] offset:{1024*f}")
    g.e("s_waitcnt lgkmcnt(0)")
    g.e("s_barrier")
    g.e("s_lshl_b32 s27, s25, 12")
    g.e("s_lshl_b32 s29, s26, 11")
    g.e("s_add_u32 s27, s27, s29")
    g.e("v_add_u32 v8, s27, v7")
    g.e("v_add_u32 v9, 65536, v8")
    for p in range(8):
        base = "v8" if p < 4 else "v9"
        for nf in range(2):
            g.e(f"ds_read_b128 v[{96+8*p+4*nf}:{99+8*p+4*nf}], {base} offset:{16384*(p%4)+1024*nf}")
    g.e("s_waitcnt lgkmcnt(0)")
    for st in (4, 2, 1):
        for p in range(st):
            for i in range(0, 8, 2):
                g.e(f"v_pk_add_f32 {P(96+8*p+i)}, {P(96+8*p+i)}, {P(96+8*(p+st)+i)}")
    g.e("s_waitcnt vmcnt(0)")
    for nf in range(2):
        for h in range(2):
            r = 96+4*nf+2*h
            round_pair(g, r, 12)
            g.e(f"v_pk_mul_f32 {P(r)}, {P(r)}, {P(80+4*nf+2*h)}")
            round_pair(g, r, 12)
            g.e(f"v_lshlrev_b32 v14, 16, v{88+2*nf+h}")
            g.e(f"v_and_b32 v15, 0xffff0000, v{88+2*nf+h}")
            g.e(f"v_pk_add_f32 {P(r)}, {P(r)}, {P(14)}")
            g.e(f"v_cvt_pk_bf16_f32 v{112+2*nf+h}, v{r}, v{r+1}")
        g.e(f"buffer_store_dwordx2 v[{112+2*nf}:{113+2*nf}], v10, s[16:19], 0 offen offset:{32*nf}")

def main(out_path):
    g = G()
    name = NAME + "_kernel"
    g.raw(f".globl {name}")
    g.raw(".p2align 8")
    g.raw(f".type {name},@function")
    g.raw(f"{name}:")
    g.e("s_getpc_b64 s[86:87]")
    g.e("s_cmp_ge_u32 s2, 256")
    g.e("s_cbranch_scc1 k_done")
    g.e("s_load_dwordx2 s[4:5], s[0:1], 80")
    g.e("s_load_dwordx2 s[90:91], s[0:1], 72")
    g.e("v_lshrrev_b32 v1, 6, v0")
    g.e("s_nop 0")
    g.e("v_readfirstlane_b32 s95, v1")
    g.e("s_waitcnt lgkmcnt(0)")
    srd(g, 96, 90, 0, 256)
    srd(g, 76, 4, WS_FLAG, 256*64)
    g.e("s_lshl_b32 s94, s2, 6")
    g.e("v_mov_b32 v255, s94")
    g.e("v_mov_b32 v254, 0")
    g.e("buffer_store_dword v254, v255, s[76:79], 0 offen sc1")
    srd(g, 64, 4, WS_FLAG2, 256*64)
    g.e("buffer_store_dword v254, v255, s[64:67], 0 offen sc1")
    g.e("s_cmp_lg_u32 s95, 0")
    g.e("s_cbranch_scc1 no_rank")
    rank_issue(g)
    g.lab("no_rank")
    if PROFILE:
        srd(g, 72, 4, WS_PROF, 256*1024)
    stamp(g)
    task_mod(g)
    g.e("s_cmp_ge_u32 s95, 4")
    g.e("s_cbranch_scc1 helper")
    arrive(g, 1, "a")
    l1_prefetch(g)
    stamp(g)
    g.e("s_cmp_lt_u32 s2, 48")
    g.e("s_cbranch_scc1 m_nowt")
    g.e("s_sub_u32 s70, s2, 48")
    task_wt(g, 70, "m")
    g.lab("m_nowt")
    stamp(g)
    phase_l1(g)
    stamp(g)
    arrive(g, 2, "b")
    stamp(g)
    phase_l2(g)
    stamp(g)
    arrive(g, 3, "c")
    stamp(g)
    phase_l3(g)
    stamp(g)
    arrive(g, 4, "d")
    g1_prefetch(g)
    g.e("s_branch join")
    g.lab("helper")
    g.e("v_subrev_u32 v0, 256, v0")
    if CODEPF:
        g.e(f"s_cmp_ge_u32 s2, {CODEPF}")
        g.e("s_cbranch_scc1 h_nopf")
        g.e("s_mov_b32 s8, s86")
        g.e("s_mov_b32 s9, s87")
        g.e(f"s_mov_b32 s10, k_done-{name}-4")
        g.e("s_mov_b32 s11, 0x00020000")
        g.e("v_lshlrev_b32 v1, 4, v0")
        g.e("s_mov_b32 s12, 0")
        for i in range(20):
            g.e(f"buffer_load_dwordx4 v[{16+4*i}:{19+4*i}], v1, s[8:11], s12 offen")
            g.e("s_add_u32 s12, s12, 4096")
        g.lab("h_nopf")
    if PRETOUCH:
        srd(g, 8, 4, 0, WS_END)
        g.e("v_lshlrev_b32 v1, 16, v0")
        g.e("buffer_load_dword v2, v1, s[8:11], 0 offen offset:128")
        g.e("s_mov_b32 s12, 0x1000000")
        g.e("buffer_load_dword v3, v1, s[8:11], s12 offen offset:128")
        g.e("s_waitcnt vmcnt(0)")
    g.e("s_cmp_lt_u32 s2, 48")
    g.e("s_cbranch_scc1 h_nowt")
    g.e("s_cmp_ge_u32 s2, 96")
    g.e("s_cbranch_scc1 h_nowt")
    g.e("s_add_u32 s70, s2, 160")
    task_wt(g, 70, "a")
    g.lab("h_nowt")
    task_wab(g)
    g.e("s_barrier")
    g.e("s_barrier")
    g.e("s_waitcnt vmcnt(0)")
    g.e("s_barrier")
    task_w1(g)
    g.e("s_barrier")
    g.e("s_barrier")
    g.e("s_cmp_lg_u32 s2, 0")
    g.e("s_cbranch_scc1 h_nocol0")
    g.e("s_barrier")
    g.lab("h_nocol0")
    g.e("s_barrier")
    g.e("s_waitcnt vmcnt(0)")
    g.e("s_barrier")
    task_w2(g)
    g.e("s_barrier")
    g.e("s_barrier")
    g.e("s_barrier")
    g.e("v_add_u32 v0, 256, v0")
    lid_read(g)
    g.e("s_waitcnt vmcnt(0)")
    g.e("s_barrier")
    g1_prefetch(g)
    g.lab("join")
    stamp(g)
    phase_g1(g)
    stamp(g)
    g2_prefetch(g)
    arrive(g, 5, "e")
    stamp(g)
    phase_g2(g)
    stamp(g)
    if PROFILE:
        g.e("v_writelane_b32 v248, s71, 28")
        g.e("v_writelane_b32 v248, s69, 29")
        g.e("v_writelane_b32 v248, s68, 30")
    stamp_flush(g)
    g.lab("k_done")
    g.e("s_endpgm")
    hdr = open("cdna_kernels/" + NAME + ".s.ref").read().split("\n")
    head = []
    for l in hdr:
        if l.startswith("; Override"):
            break
        head.append(l)
    txt = "\n".join(head) + "\n"
    txt += f"; @launch grid=(256,1,1) block=(512,1,1) lds=131136\n"
    txt += '.amdgcn_target "amdgcn-amd-amdhsa--gfx950"\n.text\n'
    txt += "\n".join(g.L) + "\n"
    txt += '.section .rodata,"a"\n.p2align 6\n'
    txt += f""".amdhsa_kernel {name}
  .amdhsa_next_free_vgpr 256
  .amdhsa_next_free_sgpr 102
  .amdhsa_accum_offset 256
  .amdhsa_group_segment_fixed_size 0
  .amdhsa_kernarg_size 88
  .amdhsa_user_sgpr_count 2
  .amdhsa_user_sgpr_kernarg_segment_ptr 1
  .amdhsa_system_sgpr_workgroup_id_x 1
.end_amdhsa_kernel
"""
    open(out_path, "w").write(txt)

if __name__ == "__main__":
    if len(sys.argv) > 2 and sys.argv[2] == "prof":
        PROFILE = True
    main(sys.argv[1] if len(sys.argv) > 1 else "cdna_kernels/" + NAME + ".s")
```

```python
import sys, math, struct
from gen_multi import (G, P, f2u, cadd, csub, cadd_mi, cadd_pi, cadd_s, cmul, dft8, dft4, gen_tw, srd,
                       allreduce32, round_pair, round1, ln_mod, split_pair, merge_pair, const_tw, set_k, KS, NAME)

WS_MOD  = 0
WS_WAB  = 0x4000
WS_FLAG = 0xC000
WS_WT   = 0x10000
WS_W1P  = WS_WT + 256*8192
WS_W2P  = WS_W1P + 16*16*7*1024
WS_XD   = WS_W2P + 8*56*4*1024
WS_XD   = (WS_XD + 0xFFFF) & ~0xFFFF
WS_ZS   = WS_XD + 256*16384
WS_X1   = WS_ZS + 256*16384
WS_H2   = WS_X1 + 2048*1024
WS_HID  = WS_H2 + 2048*1024
WS_FLAG2 = WS_HID + 128*56*1024
WS_END  = WS_FLAG2 + 256*64

SC = ""
SCS = " sc1"

LDS_X1 = 0
LDS_F  = 8*2304
F_RS   = 2064
LDS_MIR = 16384 + 8*2304
LDS_LID = 151552
FORCE_SLOW = False
PRETOUCH = False
CODEPF = 16
POLLSLEEP = 3

PROFILE = False
WS_PROF = WS_END
_pidx = [0]
def stamp(g):
    if not PROFILE:
        return
    i = _pidx[0]; _pidx[0] += 1
    g.e("s_memrealtime s[88:89]")
    g.e("s_waitcnt lgkmcnt(0)")
    g.e(f"v_writelane_b32 v248, s88, {i}")

def stamp_flush(g):
    if not PROFILE:
        return
    g.e("s_lshl_b32 s88, s2, 10")
    g.e("s_lshl_b32 s89, s95, 7")
    g.e("s_add_u32 s88, s88, s89")
    g.e("v_and_b32 v255, 63, v0")
    g.e("v_lshl_add_u32 v255, v255, 2, s88")
    g.e("s_mov_b64 exec, 0xffffffff")
    g.e("buffer_store_dword v248, v255, s[72:75], 0 offen")

_sid = [0]
def st_dual(g, instr):
    k = _sid[0]; _sid[0] += 1
    g.e("s_cmp_eq_u32 s69, 1")
    g.e(f"s_cbranch_scc1 sdf_{k}")
    g.e(instr + SCS)
    g.e(f"s_branch sde_{k}")
    g.lab(f"sdf_{k}")
    g.e(instr)
    g.lab(f"sde_{k}")

def arrive(g, val, tag):
    local = val >= 4
    g.e("s_waitcnt vmcnt(28) lgkmcnt(0)" if val == 5 else "s_waitcnt vmcnt(0) lgkmcnt(0)")
    if val == 5 and PROFILE:
        g.e("s_memrealtime s[88:89]")
        g.e("s_waitcnt lgkmcnt(0)")
        g.e("v_writelane_b32 v248, s88, 24")
    if val != 1:
        g.e("s_barrier")
    g.e("s_cmp_lg_u32 s95, 0")
    g.e(f"s_cbranch_scc1 arr_skip_{tag}")
    g.e("s_mov_b64 s[92:93], exec")
    g.e("s_mov_b64 exec, 1")
    if val == 1:
        g.e("s_and_b32 s94, s2, 3")
        g.e("s_lshl_b32 s94, s94, 6")
        g.e("v_mov_b32 v255, s94")
        g.e("v_mov_b32 v254, 1")
        g.e(f"buffer_atomic_add v254, v255, s[96:99], 0 offen sc1")
        g.e("s_cmp_ge_u32 s2, 16")
        g.e(f"s_cbranch_scc1 arr_no16")
        g.e("v_mov_b32 v255, 16")
        g.e(f"buffer_atomic_add v254, v255, s[96:99], 0 offen sc1")
        g.lab("arr_no16")
    elif not local:
        g.e("s_lshl_b32 s94, s2, 6")
        g.e("v_mov_b32 v255, s94")
        g.e(f"v_mov_b32 v254, {val}")
        g.e(f"buffer_store_dword v254, v255, s[76:79], 0 offen sc1")
    else:
        g.e("s_lshl_b32 s94, s71, 6")
        g.e("v_mov_b32 v255, s94")
        g.e(f"v_mov_b32 v254, {val}")
        st_dual(g, "buffer_store_dword v254, v255, s[64:67], 0 offen")
    g.e("s_mov_b64 exec, s[92:93]")
    g.lab(f"arr_skip_{tag}")

def wait(g, val, tag):
    local = val >= 4
    g.e("s_cmp_lg_u32 s95, 0")
    g.e(f"s_cbranch_scc1 wait_skip_{tag}")
    g.e("v_and_b32 v253, 63, v0")
    g.e("v_lshlrev_b32 v253, 6, v253")
    if val == 1:
        g.e("s_mov_b64 s[92:93], exec")
        g.e("s_mov_b64 exec, 1")
        g.e("v_mov_b32 v253, 16")
        g.lab(f"wait_loop_{tag}")
        g.e(f"buffer_load_dword v254, v253, s[96:99], 0 offen sc1")
        g.e("s_waitcnt vmcnt(0)")
        g.e("v_cmp_gt_u32 vcc, 16, v254")
        g.e("s_cmp_eq_u64 vcc, 0")
        g.e(f"s_cbranch_scc1 wait_out_{tag}")
        g.e("s_sleep 6")
        g.e(f"s_branch wait_loop_{tag}")
        g.lab(f"wait_out_{tag}")
        g.e("s_mov_b64 exec, s[92:93]")
    else:
        if val == 2:
            g.e("s_mov_b64 s[92:93], exec")
            g.e("s_mov_b64 exec, 15")
            g.lab(f"wait_loop0_{tag}")
            g.e(f"buffer_load_dword v254, v253, s[96:99], 0 offen sc1")
            g.e("s_waitcnt vmcnt(0)")
            g.e("v_cmp_gt_u32 vcc, 64, v254")
            g.e("s_cmp_eq_u64 vcc, 0")
            g.e(f"s_cbranch_scc0 wait_loop0_{tag}")
            g.e("s_mov_b64 exec, s[92:93]")
        sr = "s[64:67]" if local else "s[76:79]"
        if local:
            g.e("s_cmp_eq_u32 s69, 1")
            g.e(f"s_cbranch_scc0 wait_loop_{tag}")
            g.e("s_lshr_b32 s94, s71, 5")
            g.e("s_lshl_b32 s94, s94, 11")
            g.e("s_mov_b64 s[92:93], exec")
            g.e("s_mov_b64 exec, 0xffffffff")
            g.lab(f"wait_floop_{tag}")
            g.e(f"buffer_load_dword v254, v253, {sr}, s94 offen sc1")
            g.e("s_waitcnt vmcnt(0)")
            g.e(f"v_cmp_gt_u32 vcc, {val}, v254")
            g.e("s_cmp_eq_u64 vcc, 0")
            g.e(f"s_cbranch_scc0 wait_floop_{tag}")
            g.e("s_mov_b64 exec, s[92:93]")
            g.e(f"s_branch wait_skip_{tag}")
        g.lab(f"wait_loop_{tag}")
        for i in range(4):
            g.e(f"s_movk_i32 s94, {4096*i}")
            g.e(f"buffer_load_dword v{249+i}, v253, {sr}, s94 offen sc1")
        g.e("s_waitcnt vmcnt(0)")
        g.e("v_min_u32 v249, v249, v250")
        g.e("v_min_u32 v251, v251, v252")
        g.e("v_min_u32 v249, v249, v251")
        g.e(f"v_cmp_gt_u32 vcc, {val}, v249")
        g.e("s_cmp_eq_u64 vcc, 0")
        g.e(f"s_cbranch_scc1 wait_skip_{tag}")
        g.e(f"s_sleep {POLLSLEEP}")
        g.e(f"s_branch wait_loop_{tag}")
    g.lab(f"wait_skip_{tag}")
    g.e("s_barrier")
    stamp(g)

def rank_issue(g):
    g.e("s_getreg_b32 s68, hwreg(HW_REG_XCC_ID, 0, 4)")
    g.e("s_and_b32 s68, s68, 7")
    g.e("s_and_b32 s94, s68, 3")
    g.e("s_lshl_b32 s94, s94, 6")
    g.e("s_lshr_b32 s3, s68, 2")
    g.e("s_lshl_b32 s3, s3, 2")
    g.e("s_add_u32 s94, s94, s3")
    g.e("s_add_u32 s94, s94, 8")
    g.e("s_mov_b64 s[92:93], exec")
    g.e("s_mov_b64 exec, 1")
    g.e("v_mov_b32 v255, s94")
    g.e("v_mov_b32 v239, 1")
    g.e("buffer_atomic_add v239, v255, s[96:99], 0 offen sc0 sc1")
    g.e("s_mov_b64 exec, s[92:93]")

def rank_resolve(g):
    g.e("s_cmp_lg_u32 s95, 0")
    g.e("s_cbranch_scc1 rr_skip")
    g.e("v_and_b32 v253, 7, v0")
    g.e("v_and_b32 v254, 3, v253")
    g.e("v_lshlrev_b32 v254, 6, v254")
    g.e("v_lshrrev_b32 v253, 2, v253")
    g.e("v_lshl_add_u32 v254, v253, 2, v254")
    g.e("buffer_load_dword v253, v254, s[96:99], 0 offen offset:8 sc1")
    g.e("s_waitcnt vmcnt(0)")
    g.e("v_cmp_ne_u32 vcc, 32, v253")
    g.e("v_readfirstlane_b32 s3, v239")
    g.e("s_lshl_b32 s94, s68, 5")
    g.e("s_add_u32 s94, s94, s3")
    g.e("s_cmp_eq_u64 vcc, 0")
    g.e("s_cselect_b32 s3, 1, 0")
    if FORCE_SLOW:
        g.e("s_mov_b32 s3, 0")
    g.e("s_cmp_eq_u32 s3, 1")
    g.e("s_cselect_b32 s94, s94, s2")
    g.e("v_mov_b32 v254, s94")
    g.e("v_mov_b32 v255, s3")
    g.e(f"v_mov_b32 v252, {LDS_LID}")
    g.e("ds_write_b64 v252, v[254:255]")
    g.lab("rr_skip")

def lid_read(g):
    g.e(f"v_mov_b32 v252, {LDS_LID}")
    g.e("ds_read_b64 v[254:255], v252")
    g.e("s_waitcnt lgkmcnt(0)")
    g.e("v_readfirstlane_b32 s71, v254")
    g.e("v_readfirstlane_b32 s69, v255")
    g.e("s_nop 3")

def task_mod_issue(g):
    g.e("s_cmp_ge_u32 s2, 48")
    g.e("s_cbranch_scc1 modi_end")
    g.e("v_lshrrev_b32 v1, 3, v0")
    g.e("v_and_b32 v2, 7, v0")
    g.e("v_lshlrev_b32 v3, 1, v1")
    g.e("s_movk_i32 s24, 6144")
    g.e("v_mul_lo_u32 v4, v1, s24")
    g.e("s_lshl_b32 s25, s2, 7")
    g.e("v_lshl_add_u32 v4, v2, 4, v4")
    g.e("v_add_u32 v4, s25, v4")
    srd(g, 12, 8, 0, 1024)
    srd(g, 16, 10, 0, 512*6144)
    srd(g, 20, 4, WS_MOD, 3072*4)
    for i in range(8):
        g.e(f"buffer_load_ushort v{16+i}, v3, s[12:15], 0 offen offset:{128*i}")
    g.e("s_mov_b32 s26, 0")
    for i in range(8):
        g.e(f"buffer_load_dwordx4 v[{32+4*i}:{35+4*i}], v4, s[16:19], s26 offen")
        g.e(f"s_add_u32 s26, s26, {64*6144}")
    g.lab("modi_end")

def task_mod(g):
    g.e("s_cmp_ge_u32 s2, 48")
    g.e("s_cbranch_scc1 mod_end")
    for i in range(8):
        g.e(f"v_mov_b32 v{8+i}, 0")
    g.e("s_waitcnt vmcnt(0)")
    for i in range(8):
        r = 16+i
        g.e(f"v_lshlrev_b32 v{r}, 16, v{r}")
        g.e(f"v_mul_f32 v{24+i}, 0x{f2u(-math.log2(math.e)):08x}, v{r}")
    for i in range(8):
        g.e(f"v_exp_f32 v{24+i}, v{24+i}")
    for i in range(8):
        g.e(f"v_add_f32 v{24+i}, 1.0, v{24+i}")
    for i in range(8):
        g.e(f"v_rcp_f32 v{24+i}, v{24+i}")
    for i in range(8):
        g.e(f"v_mul_f32 v{16+i}, v{16+i}, v{24+i}")
    for i in range(8):
        round1(g, 16+i)
    for i in range(8):
        g.e(f"v_mov_b32 v7, v{16+i}")
        g.e(f"v_mov_b32 v6, v{16+i}")
        for q in range(4):
            w = 32+4*i+q
            g.e(f"v_lshlrev_b32 v4, 16, v{w}")
            g.e(f"v_and_b32 v5, 0xffff0000, v{w}")
            g.e(f"v_pk_fma_f32 {P(8+2*q)}, {P(4)}, {P(6)}, {P(8+2*q)}")
    g.e("v_lshlrev_b32 v5, 8, v1")
    g.e("v_lshl_add_u32 v5, v2, 5, v5")
    g.e("ds_write_b128 v5, v[8:11]")
    g.e("ds_write_b128 v5, v[12:15] offset:16")
    g.e("s_waitcnt lgkmcnt(0)")
    g.e("s_barrier")
    g.e("s_cmp_lg_u32 s95, 0")
    g.e("s_cbranch_scc1 mod_end")
    g.e("v_lshlrev_b32 v5, 2, v0")
    for i in range(64):
        g.e(f"ds_read_b32 v{32+i}, v5 offset:{256*i}")
    g.e("s_waitcnt lgkmcnt(0)")
    for st in (32, 16, 8, 4, 2):
        for i in range(0, st, 2):
            g.e(f"v_pk_add_f32 {P(32+i)}, {P(32+i)}, {P(32+i+st)}")
    g.e("v_add_f32 v32, v32, v33")
    round1(g, 32)
    g.e("s_lshr_b32 s26, s2, 3")
    g.e("s_cmp_eq_u32 s26, 1")
    g.e("s_cselect_b32 s27, 1, 0")
    g.e("s_cmp_eq_u32 s26, 4")
    g.e("s_cselect_b32 s27, 1, s27")
    g.e("s_cmp_eq_u32 s27, 0")
    g.e("s_cbranch_scc1 mod_st")
    g.e("v_add_f32 v32, 1.0, v32")
    round1(g, 32)
    g.lab("mod_st")
    g.e("s_lshl_b32 s26, s2, 8")
    g.e("v_add_u32 v5, s26, v5")
    g.e(f"buffer_store_dword v32, v5, s[20:23], 0 offen{SCS}")
    g.lab("mod_end")

def task_w1(g):
    g.e("s_load_dwordx2 s[8:9], s[0:1], 32")
    g.e("s_waitcnt lgkmcnt(0)")
    srd(g, 12, 8, 0, 512*3584)
    srd(g, 16, 4, WS_W1P, 16*16*7*1024)
    g.e("s_and_b32 s25, s2, 15")
    g.e("s_lshr_b32 s26, s2, 4")
    g.e("s_movk_i32 s27, 224")
    g.e("v_cmp_gt_u32 vcc, s27, v0")
    g.e("s_and_saveexec_b64 s[28:29], vcc")
    g.e("s_cbranch_execz w1_end")
    g.e("v_and_b32 v1, 7, v0")
    g.e("v_bfe_u32 v2, v0, 3, 2")
    g.e("v_lshrrev_b32 v3, 5, v0")
    g.e("s_lshl_b32 s27, s26, 5")
    g.e("v_lshl_add_u32 v4, v2, 3, s27")
    g.e("s_movk_i32 s30, 3584")
    g.e("v_mul_lo_u32 v4, v4, s30")
    g.e("s_mul_i32 s31, s25, 224")
    g.e("v_lshl_add_u32 v5, v3, 5, s31")
    g.e("v_lshl_add_u32 v5, v1, 2, v5")
    g.e("v_add_u32 v4, v4, v5")
    g.e("s_mov_b32 s32, 0")
    for e in range(8):
        g.e(f"buffer_load_dword v{8+e}, v4, s[12:15], s32 offen")
        g.e(f"s_add_u32 s32, s32, 3584")
    g.e("s_lshl_b32 s33, s25, 4")
    g.e("s_add_u32 s33, s33, s26")
    g.e("s_mul_i32 s33, s33, 7168")
    g.e("v_lshl_add_u32 v6, v3, 10, s33")
    g.e("v_lshl_add_u32 v6, v2, 8, v6")
    g.e("v_lshl_add_u32 v6, v1, 5, v6")
    g.e("s_mov_b32 s34, 0x05040100")
    g.e("s_mov_b32 s35, 0x07060302")
    g.e("s_waitcnt vmcnt(0)")
    for q in range(4):
        g.e(f"v_perm_b32 v{16+q}, v{9+2*q}, v{8+2*q}, s34")
        g.e(f"v_perm_b32 v{20+q}, v{9+2*q}, v{8+2*q}, s35")
    g.e(f"buffer_store_dwordx4 v[16:19], v6, s[16:19], 0 offen{SCS}")
    g.e(f"buffer_store_dwordx4 v[20:23], v6, s[16:19], 0 offen offset:16{SCS}")
    g.lab("w1_end")
    g.e("s_mov_b64 exec, s[28:29]")

def task_w2(g):
    g.e("s_cmp_ge_u32 s2, 224")
    g.e("s_cbranch_scc1 w2_end")
    g.e("s_load_dwordx2 s[8:9], s[0:1], 40")
    g.e("s_waitcnt lgkmcnt(0)")
    srd(g, 12, 8, 0, 1792*1024)
    srd(g, 16, 4, WS_W2P, 8*56*4*1024)
    g.e("s_and_b32 s25, s2, 7")
    g.e("s_lshr_b32 s26, s2, 3")
    g.e("v_and_b32 v1, 7, v0")
    g.e("v_bfe_u32 v2, v0, 3, 2")
    g.e("v_bfe_u32 v3, v0, 5, 2")
    g.e("v_lshrrev_b32 v7, 7, v0")
    g.e("s_lshl_b32 s27, s26, 1")
    g.e("v_add_u32 v7, s27, v7")
    g.e("v_lshlrev_b32 v4, 5, v7")
    g.e("v_lshl_add_u32 v4, v2, 3, v4")
    g.e("v_lshlrev_b32 v4, 10, v4")
    g.e("s_lshl_b32 s31, s25, 7")
    g.e("v_lshl_add_u32 v5, v3, 5, s31")
    g.e("v_lshl_add_u32 v5, v1, 2, v5")
    g.e("v_add_u32 v4, v4, v5")
    g.e("s_movk_i32 s36, 4096")
    for e in range(8):
        g.e(f"buffer_load_dword v{8+e}, v4, s[12:15], 0 offen offset:{1024*e}" if e < 4 else
            f"buffer_load_dword v{8+e}, v4, s[12:15], s36 offen offset:{1024*(e-4)}")
    g.e("s_mul_i32 s33, s25, 56")
    g.e("v_add_u32 v6, s33, v7")
    g.e("v_lshlrev_b32 v6, 12, v6")
    g.e("v_lshl_add_u32 v6, v3, 10, v6")
    g.e("v_lshl_add_u32 v6, v2, 8, v6")
    g.e("v_lshl_add_u32 v6, v1, 5, v6")
    g.e("s_mov_b32 s34, 0x05040100")
    g.e("s_mov_b32 s35, 0x07060302")
    g.e("s_waitcnt vmcnt(0)")
    for q in range(4):
        g.e(f"v_perm_b32 v{16+q}, v{9+2*q}, v{8+2*q}, s34")
        g.e(f"v_perm_b32 v{20+q}, v{9+2*q}, v{8+2*q}, s35")
    g.e(f"buffer_store_dwordx4 v[16:19], v6, s[16:19], 0 offen{SCS}")
    g.e(f"buffer_store_dwordx4 v[20:23], v6, s[16:19], 0 offen offset:16{SCS}")
    g.lab("w2_end")

def task_wt(g, idx_sreg, tag):
    g.e("s_load_dwordx4 s[8:11], s[0:1], 8")
    g.e("s_waitcnt lgkmcnt(0)")
    srd(g, 12, 8, 0, 2048*514)
    srd(g, 16, 10, 0, 2048*514)
    srd(g, 20, 4, WS_WT, 256*8192)
    g.e(f"s_and_b32 s25, s{idx_sreg}, 7")
    g.e(f"s_lshr_b32 s26, s{idx_sreg}, 3")
    g.e("s_and_b32 s27, s26, 7")
    g.e("s_lshr_b32 s26, s26, 3")
    g.e("v_and_b32 v1, 63, v0")
    g.e("s_lshl_b32 s28, s26, 6")
    g.e("v_add_u32 v1, s28, v1")
    g.e("v_lshrrev_b32 v2, 6, v0")
    g.e("s_lshr_b32 s29, s25, 1")
    g.e("s_lshl_b32 s29, s29, 9")
    g.e("s_and_b32 s32, s25, 1")
    g.e("s_lshl_b32 s32, s32, 6")
    g.e("s_add_u32 s29, s29, s32")
    g.e("s_add_u32 s29, s29, s27")
    g.e("v_lshl_add_u32 v3, v2, 3, s29")
    g.e("s_movk_i32 s33, 514")
    g.e("v_mul_lo_u32 v3, v3, s33")
    g.e("v_lshl_add_u32 v3, v1, 1, v3")
    for pp in range(2):
        for c2 in range(4):
            off = (32*pp + 128*c2)*514
            g.e(f"s_mov_b32 s34, {off}")
            g.e(f"buffer_load_ushort v{8+8*pp+c2}, v3, s[12:15], s34 offen")
            g.e(f"buffer_load_ushort v{12+8*pp+c2}, v3, s[16:19], s34 offen")
    g.e("v_lshlrev_b32 v4, 13, v1")
    g.e("s_lshl_b32 s35, s25, 10")
    g.e("s_lshl_b32 s36, s27, 7")
    g.e("s_add_u32 s35, s35, s36")
    g.e("v_add_u32 v4, s35, v4")
    g.e("v_lshl_add_u32 v4, v2, 4, v4")
    g.e("s_waitcnt vmcnt(0)")
    for pp in range(2):
        for c2 in range(4):
            g.e(f"v_lshl_or_b32 v{8+8*pp+c2}, v{12+8*pp+c2}, 16, v{8+8*pp+c2}")
    g.e(f"buffer_store_dwordx4 v[8:11], v4, s[20:23], 0 offen{SCS}")
    g.e(f"buffer_store_dwordx4 v[16:19], v4, s[20:23], 0 offen offset:64{SCS}")

def task_wab(g):
    g.e("s_cmp_lt_u32 s2, 248")
    g.e("s_cbranch_scc1 wab_end")
    g.e("s_load_dwordx4 s[8:11], s[0:1], 8")
    g.e("s_waitcnt lgkmcnt(0)")
    srd(g, 12, 8, 0, 2048*514)
    srd(g, 16, 10, 0, 2048*514)
    srd(g, 20, 4, WS_WAB, 2048*16)
    g.e("s_sub_u32 s24, s2, 248")
    g.e("s_lshr_b32 s25, s24, 1")
    g.e("s_lshl_b32 s25, s25, 9")
    g.e("s_and_b32 s26, s24, 1")
    g.e("s_lshl_b32 s26, s26, 6")
    g.e("s_add_u32 s25, s25, s26")
    g.e("v_lshrrev_b32 v1, 5, v0")
    g.e("v_bfe_u32 v2, v0, 2, 3")
    g.e("v_and_b32 v3, 3, v0")
    g.e("v_lshl_add_u32 v4, v2, 3, v1")
    g.e("v_lshl_add_u32 v4, v3, 7, v4")
    g.e("s_movk_i32 s33, 514")
    g.e("v_lshlrev_b32 v9, 4, v0")
    g.e("v_add_u32 v5, s25, v4")
    g.e("v_sub_u32 v6, 2048, v5")
    g.e("v_and_b32 v6, 2047, v6")
    g.e("v_mul_lo_u32 v7, v5, s33")
    g.e("v_mul_lo_u32 v8, v6, s33")
    g.e("buffer_load_ushort v16, v7, s[12:15], 0 offen")
    g.e("buffer_load_ushort v17, v7, s[16:19], 0 offen")
    g.e("buffer_load_ushort v18, v7, s[12:15], 0 offen offset:512")
    g.e("buffer_load_ushort v19, v7, s[16:19], 0 offen offset:512")
    g.e("buffer_load_ushort v20, v8, s[12:15], 0 offen")
    g.e("buffer_load_ushort v21, v8, s[16:19], 0 offen")
    g.e("buffer_load_ushort v22, v8, s[12:15], 0 offen offset:512")
    g.e("buffer_load_ushort v23, v8, s[16:19], 0 offen offset:512")
    g.e("s_lshl_b32 s37, s24, 12")
    g.e("s_waitcnt vmcnt(0)")
    for r in range(16, 24):
        g.e(f"v_lshlrev_b32 v{r}, 16, v{r}")
    g.e("v_add_f32 v24, v16, v20")
    g.e("v_sub_f32 v25, v17, v21")
    g.e("v_add_f32 v26, v18, v22")
    g.e("v_sub_f32 v27, v19, v23")
    g.e("v_add_f32 v28, v24, v26")
    g.e("v_add_f32 v29, v25, v27")
    g.e("v_sub_f32 v30, v24, v26")
    g.e("v_sub_f32 v31, v25, v27")
    for r in range(28, 32):
        g.e(f"v_mul_f32 v{r}, 0.25, v{r}")
    g.e(f"buffer_store_dwordx4 v[28:31], v9, s[20:23], s37 offen{SCS}")
    g.lab("wab_end")

XR1 = [240+j for j in range(8)]
def l1_prefetch(g):
    g.e("s_load_dwordx2 s[6:7], s[0:1], 0")
    g.e("v_and_b32 v1, 31, v0")
    g.e("v_lshrrev_b32 v2, 5, v0")
    g.e("s_lshl_b32 s3, s2, 13")
    g.e("v_lshl_add_u32 v3, v2, 10, s3")
    g.e("v_lshl_add_u32 v3, v1, 2, v3")
    g.e("s_waitcnt lgkmcnt(0)")
    srd(g, 8, 6, 0, 2048*1024)
    for j in range(8):
        g.e(f"buffer_load_dword v{XR1[j]}, v3, s[8:11], 0 offen offset:{128*j}")

def phase_l1(g):
    set_k(g)
    g.e("v_and_b32 v1, 31, v0")
    g.e("v_lshrrev_b32 v2, 5, v0")
    g.e("v_lshlrev_b32 v4, 3, v1")
    srd(g, 12, 4, WS_MOD, 3072*4)
    srd(g, 16, 4, WS_XD, 256*16384)
    Z = [16+2*j for j in range(8)]
    T = [32, 34, 36, 38]
    SCm = [48+2*j for j in range(8)]
    SH = [64+2*j for j in range(8)]
    TW1 = [80+2*j for j in range(7)]
    TW2 = [94+2*j for j in range(7)]
    TWS = [108+2*j for j in range(4)]
    g.e("v_cvt_f32_u32 v5, v1")
    g.e(f"v_mul_f32 v5, 0x{f2u(1/256):08x}, v5")
    gen_tw(g, TW1, 5, range(1, 8), 6)
    g.e("v_and_b32 v7, 3, v0")
    g.e("v_cvt_f32_u32 v5, v7")
    g.e(f"v_mul_f32 v5, 0x{f2u(1/32):08x}, v5")
    gen_tw(g, TW2, 5, range(1, 8), 6)
    g.e("v_lshrrev_b32 v8, 3, v0")
    g.e("v_cvt_f32_u32 v5, v8")
    g.e(f"v_mul_f32 v5, 0x{f2u(1/512):08x}, v5")
    for q in range(4):
        g.e(f"v_add_f32 v6, 0x{f2u(q/8):08x}, v5")
        g.e(f"v_cos_f32 v{TWS[q]}, v6")
        g.e(f"v_sin_f32 v{TWS[q]+1}, -v6")
    g.e("v_mul_u32_u24 v9, 2304, v2")
    g.e("v_lshl_add_u32 v10, v1, 3, v9")
    g.e("v_bfe_u32 v11, v0, 2, 3")
    g.e("v_mul_u32_u24 v12, 288, v11")
    g.e("v_add_u32 v12, v12, v9")
    g.e("v_lshl_add_u32 v12, v7, 3, v12")
    g.e(f"v_mul_u32_u24 v13, {F_RS}, v2")
    g.e("v_lshl_add_u32 v13, v11, 5, v13")
    g.e("v_lshl_add_u32 v13, v7, 3, v13")
    g.e(f"v_add_u32 v13, {LDS_F}, v13")
    g.e("s_waitcnt vmcnt(0)")
    for j in range(8):
        g.e(f"v_lshlrev_b32 v{Z[j]}, 16, v{XR1[j]}")
        g.e(f"v_and_b32 v{Z[j]+1}, 0xffff0000, v{XR1[j]}")
    wait(g, 1, "a")
    for j in range(8):
        g.e(f"buffer_load_dwordx2 {P(SH[j])}, v4, s[12:15], 0 offen offset:{256*j}{SC}")
        g.e(f"buffer_load_dwordx2 {P(SCm[j])}, v4, s[12:15], 0 offen offset:{2048+256*j}{SC}")
    g.e("s_waitcnt vmcnt(0)")
    ln_mod(g, Z, SCm, SH, 120, 121, 122, 123, 124)
    y, free = dft8(g, Z, T, -1, KS)
    for r in range(1, 8):
        cmul(g, y[r], y[r], TW1[r-1], free[0])
    for r in range(8):
        g.e(f"ds_write_b64 v10, {P(y[r])} offset:{288*r}")
    allr = y + free
    x = allr[:8]; T2 = allr[8:]
    for t1 in range(8):
        g.e(f"ds_read_b64 {P(x[t1])}, v12 offset:{32*t1}")
    g.e("s_waitcnt lgkmcnt(0)")
    y, free = dft8(g, x, T2, -1, KS)
    for p in range(1, 8):
        cmul(g, y[p], y[p], TW2[p-1], free[0])
    for p in range(8):
        g.e(f"ds_write_b64 v13, {P(y[p])} offset:{256*p}")
    g.e("s_waitcnt lgkmcnt(0)")
    g.e("s_barrier")
    g.e("v_and_b32 v14, 7, v0")
    g.e(f"v_mul_u32_u24 v15, {F_RS}, v14")
    g.e(f"v_add_u32 v15, {LDS_F}, v15")
    g.e("v_sub_u32 v9, 64, v8")
    g.e("v_cmp_eq_u32 vcc, 0, v8")
    g.e("v_mov_b32 v10, 32")
    g.e("s_nop 1")
    g.e("v_cndmask_b32 v9, v9, v10, vcc")
    g.e("v_lshl_add_u32 v10, v8, 5, v15")
    g.e("v_lshl_add_u32 v11, v9, 5, v15")
    A = [16, 18, 20, 22]; B = [24, 26, 28, 30]
    g.e("ds_read_b128 v[16:19], v10")
    g.e("ds_read_b128 v[20:23], v10 offset:16")
    g.e("ds_read_b128 v[24:27], v11")
    g.e("ds_read_b128 v[28:31], v11 offset:16")
    g.e("s_lshl_b32 s3, s2, 6")
    g.e("v_lshl_add_u32 v12, v14, 3, s3")
    g.e("v_lshl_add_u32 v13, v8, 14, v12")
    g.e("v_lshl_add_u32 v14, v9, 14, v12")
    for q in range(4):
        g.e(f"s_mov_b32 s{40+q}, 0x{q*64*16384:x}")
    g.e("s_waitcnt lgkmcnt(0)")
    ZA, fr = dft4(g, A, [32, 34], -1)
    ZB, fr2 = dft4(g, B, [36, 38], -1)
    E, D, Tt = 40, 42, 44
    g.e("s_mov_b64 s[50:51], exec")
    g.e("s_andn2_b64 exec, exec, vcc")
    for q in range(4):
        oa, ob = 46+4*q, 48+4*q
        split_pair(g, ZA[q], ZB[3-q], P(TWS[q]), E, D, Tt, oa, ob)
        g.e(f"buffer_store_dwordx2 {P(oa)}, v13, s[16:19], s{40+q} offen{SCS}")
        g.e(f"buffer_store_dwordx2 {P(ob)}, v14, s[16:19], s{40+3-q} offen{SCS}")
    g.e("s_and_b64 exec, s[50:51], vcc")
    g.e("s_cbranch_execz l1_nospecial")
    pairs = [(ZA[0], ZA[0], 0, 256), (ZA[1], ZA[3], 64, 192), (ZA[2], ZA[2], 128, None),
             (ZB[0], ZB[3], 32, 224), (ZB[1], ZB[2], 96, 160)]
    for n, (a, b, k, k2) in enumerate(pairs):
        oa, ob = 64+4*n, 66+4*n
        const_tw(g, 52, k, 512)
        split_pair(g, a, b, "s[52:53]", E, D, Tt, oa, ob)
        if k == 0:
            g.e(f"v_mov_b32 v{oa+1}, v{ob}")
            g.e(f"buffer_store_dwordx2 {P(oa)}, v12, s[16:19], 0 offen{SCS}")
            continue
        g.e(f"s_mov_b32 s54, 0x{k*16384:x}")
        g.e(f"buffer_store_dwordx2 {P(oa)}, v12, s[16:19], s54 offen{SCS}")
        if k2 is not None:
            g.e(f"s_mov_b32 s54, 0x{k2*16384:x}")
            g.e(f"buffer_store_dwordx2 {P(ob)}, v12, s[16:19], s54 offen{SCS}")
    g.lab("l1_nospecial")
    g.e("s_mov_b64 exec, s[50:51]")

def phase_l2(g):
    set_k(g)
    g.e("s_lshl_b32 s3, s2, 14")
    g.e("v_lshl_add_u32 v1, v0, 3, s3")
    g.e("s_lshl_b32 s3, s2, 13")
    g.e("v_lshl_add_u32 v2, v0, 2, s3")
    srd(g, 8, 4, WS_XD, 256*16384)
    srd(g, 12, 4, WS_WT, 256*8192)
    srd(g, 20, 4, WS_ZS, 256*16384)
    srd(g, 24, 4, WS_WAB, 2048*16)
    Z = [16+2*j for j in range(8)]
    T = [32, 34, 36, 38]
    WR = [40+j for j in range(8)]
    TW1 = [48+2*j for j in range(7)]
    TW2 = [62+2*j for j in range(7)]
    TW3 = [76+2*j for j in range(7)]
    g.e("s_movk_i32 s17, 4096")
    g.e("v_cvt_f32_u32 v5, v0")
    g.e(f"v_mul_f32 v5, 0x{f2u(1/2048):08x}, v5")
    gen_tw(g, TW1, 5, range(1, 8), 6)
    g.e("v_and_b32 v7, 31, v0")
    g.e("v_cvt_f32_u32 v5, v7")
    g.e(f"v_mul_f32 v5, 0x{f2u(1/256):08x}, v5")
    gen_tw(g, TW2, 5, range(1, 8), 6)
    g.e("v_and_b32 v8, 3, v0")
    g.e("v_cvt_f32_u32 v5, v8")
    g.e(f"v_mul_f32 v5, 0x{f2u(1/32):08x}, v5")
    gen_tw(g, TW3, 5, range(1, 8), 6)
    g.e("v_lshlrev_b32 v9, 3, v0")
    g.e("v_lshrrev_b32 v10, 5, v0")
    g.e("v_lshlrev_b32 v11, 11, v10")
    g.e("v_lshl_add_u32 v11, v7, 3, v11")
    g.e("v_mul_u32_u24 v12, 2304, v10")
    g.e("v_add_u32 v12, 16384, v12")
    g.e("v_lshl_add_u32 v13, v7, 3, v12")
    g.e("v_bfe_u32 v14, v0, 2, 3")
    g.e("v_mul_u32_u24 v14, 288, v14")
    g.e("v_add_u32 v14, v14, v12")
    g.e("v_lshl_add_u32 v15, v8, 6, v14")
    g.e("v_lshl_add_u32 v14, v8, 3, v14")
    wait(g, 2, "b")
    rank_resolve(g)
    for j in range(8):
        if j < 2:
            g.e(f"buffer_load_dwordx2 {P(Z[j])}, v1, s[8:11], 0 offen offset:{2048*j}{SC}")
        else:
            g.e(f"s_movk_i32 s19, {2048*j}")
            g.e(f"buffer_load_dwordx2 {P(Z[j])}, v1, s[8:11], s19 offen{SC}")
    for i in range(8):
        if i < 4:
            g.e(f"buffer_load_dword v{WR[i]}, v2, s[12:15], 0 offen offset:{1024*i}{SC}")
        else:
            g.e(f"buffer_load_dword v{WR[i]}, v2, s[12:15], s17 offen offset:{1024*(i-4)}{SC}")
    g.e("s_cmp_lg_u32 s2, 0")
    g.e("s_cbranch_scc1 l2_nowab")
    g.e("v_lshlrev_b32 v3, 4, v0")
    for i in range(8):
        g.e(f"s_movk_i32 s19, {4096*i}")
        g.e(f"buffer_load_dwordx4 v[{128+4*i}:{131+4*i}], v3, s[24:27], s19 offen{SC}")
    g.e("s_waitcnt vmcnt(16)")
    g.e("s_branch l2_go")
    g.lab("l2_nowab")
    g.e("s_waitcnt vmcnt(8)")
    g.lab("l2_go")
    y, free = dft8(g, Z, T, -1, KS)
    for r in range(1, 8):
        cmul(g, y[r], y[r], TW1[r-1], free[0])
    for r in range(8):
        g.e(f"ds_write_b64 v9, {P(y[r])} offset:{2048*r}")
    g.e("s_waitcnt lgkmcnt(0)")
    g.e("s_barrier")
    allr = y + free; x = allr[:8]; T2 = allr[8:]
    for t1 in range(8):
        g.e(f"ds_read_b64 {P(x[t1])}, v11 offset:{256*t1}")
    g.e("s_waitcnt lgkmcnt(0)")
    y, free = dft8(g, x, T2, -1, KS)
    for p in range(1, 8):
        cmul(g, y[p], y[p], TW2[p-1], free[0])
    for p in range(8):
        g.e(f"ds_write_b64 v13, {P(y[p])} offset:{288*p}")
    allr = y + free; x = allr[:8]; T2 = allr[8:]
    for b in range(8):
        g.e(f"ds_read_b64 {P(x[b])}, v14 offset:{32*b}")
    g.e("s_waitcnt lgkmcnt(0)")
    y, free = dft8(g, x, T2, -1, KS)
    for c in range(1, 8):
        cmul(g, y[c], y[c], TW3[c-1], free[0])
    for c in range(8):
        g.e(f"ds_write_b64 v14, {P(y[c])} offset:{32*c}")
    g.e("s_waitcnt lgkmcnt(0)")
    for i in range(4):
        g.e(f"ds_read_b128 v[{16+4*i}:{19+4*i}], v15 offset:{16*i}")
    g.e("s_waitcnt lgkmcnt(0)")
    Y0, f0 = dft4(g, [16, 18, 20, 22], [32, 34], -1)
    Y1, f1 = dft4(g, [24, 26, 28, 30], [36, 38], -1)
    g.e("s_waitcnt vmcnt(0)")
    tw = 90; tt = 92
    g.e("s_cmp_eq_u32 s2, 0")
    g.e("s_cbranch_scc1 l2_col0")
    for q in range(4):
        for e, Y in ((0, Y0), (1, Y1)):
            wr = WR[q*2+e]
            g.e(f"v_lshlrev_b32 v{tw}, 16, v{wr}")
            g.e(f"v_and_b32 v{tw+1}, 0xffff0000, v{wr}")
            cmul(g, Y[q], Y[q], tw, tt)
    g.e("s_branch l2_inv")
    g.lab("l2_col0")
    g.e("v_lshrrev_b32 v3, 5, v0")
    g.e("v_bfe_u32 v4, v0, 2, 3")
    g.e("v_lshl_add_u32 v3, v4, 3, v3")
    g.e("v_lshl_add_u32 v3, v8, 7, v3")
    g.e(f"v_lshlrev_b32 v4, 3, v3")
    g.e(f"v_add_u32 v4, {LDS_MIR}, v4")
    for q in range(4):
        for e, Y in ((0, Y0), (1, Y1)):
            g.e(f"ds_write_b64 v4, {P(Y[q])} offset:{(512*q+64*e)*8}")
    g.e("s_waitcnt lgkmcnt(0)")
    g.e("s_barrier")
    for q in range(4):
        for e, Y in ((0, Y0), (1, Y1)):
            i = q*2+e
            g.e(f"v_add_u32 v5, {512*q+64*e}, v3")
            g.e("v_sub_u32 v5, 2048, v5")
            g.e("v_and_b32 v5, 2047, v5")
            g.e("v_lshlrev_b32 v5, 3, v5")
            g.e(f"v_add_u32 v5, {LDS_MIR}, v5")
            g.e(f"ds_read_b64 {P(96+2*i)}, v5")
    g.e("s_waitcnt lgkmcnt(0)")
    for q in range(4):
        for e, Y in ((0, Y0), (1, Y1)):
            i = q*2+e
            wa, wb = 128+4*i, 130+4*i
            m = 96+2*i
            cmul(g, Y[q], Y[q], wa, tt)
            g.e(f"v_pk_mul_f32 {P(tt)}, {P(m)}, {P(wb)} op_sel:[0,0] op_sel_hi:[1,0] neg_hi:[1,0]")
            g.e(f"v_pk_fma_f32 {P(tt)}, {P(m)}, {P(wb)}, {P(tt)} op_sel:[1,1,0] op_sel_hi:[0,1,1]")
            cadd(g, Y[q], Y[q], tt)
    g.lab("l2_inv")
    A0, f0 = dft4(g, Y0, f0, +1)
    A1, f1 = dft4(g, Y1, f1, +1)
    for a in range(4):
        g.e(f"ds_write_b64 v15, {P(A0[a])} offset:{8*a}")
        g.e(f"ds_write_b64 v15, {P(A1[a])} offset:{32+8*a}")
    x = Z; T2 = T
    for c in range(8):
        g.e(f"ds_read_b64 {P(x[c])}, v14 offset:{32*c}")
    g.e("s_waitcnt lgkmcnt(0)")
    for c in range(1, 8):
        cmul(g, x[c], x[c], TW3[c-1], T2[0], conj=True)
    y, free = dft8(g, x, T2, +1, KS)
    for b in range(8):
        g.e(f"ds_write_b64 v14, {P(y[b])} offset:{32*b}")
    allr = y + free; x = allr[:8]; T2 = allr[8:]
    for p in range(8):
        g.e(f"ds_read_b64 {P(x[p])}, v13 offset:{288*p}")
    g.e("s_waitcnt lgkmcnt(0)")
    for p in range(1, 8):
        cmul(g, x[p], x[p], TW2[p-1], T2[0], conj=True)
    y, free = dft8(g, x, T2, +1, KS)
    for t1 in range(8):
        g.e(f"ds_write_b64 v11, {P(y[t1])} offset:{256*t1}")
    g.e("s_waitcnt lgkmcnt(0)")
    g.e("s_barrier")
    allr = y + free; x = allr[:8]; T2 = allr[8:]
    for r in range(8):
        g.e(f"ds_read_b64 {P(x[r])}, v9 offset:{2048*r}")
    g.e("s_waitcnt lgkmcnt(0)")
    for r in range(1, 8):
        cmul(g, x[r], x[r], TW1[r-1], T2[0], conj=True)
    y, free = dft8(g, x, T2, +1, KS)
    for j in range(8):
        if j < 2:
            g.e(f"buffer_store_dwordx2 {P(y[j])}, v1, s[20:23], 0 offen offset:{2048*j}{SCS}")
        else:
            g.e(f"s_movk_i32 s19, {2048*j}")
            g.e(f"buffer_store_dwordx2 {P(y[j])}, v1, s[20:23], s19 offen{SCS}")

def phase_l3(g):
    lid_read(g)
    set_k(g)
    g.e("s_load_dwordx2 s[6:7], s[0:1], 0")
    g.e("v_and_b32 v1, 31, v0")
    g.e("v_lshrrev_b32 v2, 5, v0")
    g.e("v_lshrrev_b32 v8, 3, v0")
    g.e("v_and_b32 v14, 7, v0")
    g.e("v_sub_u32 v9, 64, v8")
    g.e("v_cmp_eq_u32 vcc, 0, v8")
    g.e("v_mov_b32 v10, 32")
    g.e("s_nop 1")
    g.e("v_cndmask_b32 v9, v9, v10, vcc")
    g.e("s_mov_b64 s[56:57], vcc")
    g.e("s_lshl_b32 s3, s71, 6")
    g.e("v_lshl_add_u32 v12, v14, 3, s3")
    g.e("v_lshl_add_u32 v13, v8, 14, v12")
    g.e("v_lshl_add_u32 v11, v9, 14, v12")
    for q in range(4):
        g.e(f"s_mov_b32 s{40+q}, 0x{q*64*16384:x}")
    g.e("s_waitcnt lgkmcnt(0)")
    srd(g, 8, 6, 0, 2048*1024)
    srd(g, 12, 4, WS_MOD, 3072*4)
    srd(g, 16, 4, WS_ZS, 256*16384)
    srd(g, 20, 4, WS_X1, 2048*1024)
    srd(g, 24, 4, WS_H2, 2048*1024)
    XA = [16, 18, 20, 22]; XB = [24, 26, 28, 30]; XN = 32
    g.e("s_lshl_b32 s3, s71, 13")
    g.e("v_lshl_add_u32 v3, v2, 10, s3")
    g.e("v_lshl_add_u32 v3, v1, 2, v3")
    g.e("v_lshlrev_b32 v4, 3, v1")
    XR = [40+j for j in range(8)]
    SCm = [48+2*j for j in range(8)]
    SH = [64+2*j for j in range(8)]
    GA = [128+2*j for j in range(8)]
    TW1 = [80+2*j for j in range(7)]
    TW2 = [94+2*j for j in range(7)]
    TWS = [108+2*j for j in range(4)]
    for j in range(8):
        g.e(f"buffer_load_dword v{XR[j]}, v3, s[8:11], 0 offen offset:{128*j}")
    g.e("s_movk_i32 s45, 4096")
    g.e("s_movk_i32 s46, 8192")
    for j in range(8):
        g.e(f"buffer_load_dwordx2 {P(GA[j])}, v4, s[12:15], s45 offen offset:{256*j}{SC}")
        g.e(f"buffer_load_dwordx2 {P(SH[j])}, v4, s[12:15], s45 offen offset:{2048+256*j}{SC}")
        g.e(f"buffer_load_dwordx2 {P(SCm[j])}, v4, s[12:15], s46 offen offset:{256*j}{SC}")
    g.e("v_cvt_f32_u32 v5, v1")
    g.e(f"v_mul_f32 v5, 0x{f2u(1/256):08x}, v5")
    gen_tw(g, TW1, 5, range(1, 8), 6)
    g.e("v_and_b32 v7, 3, v0")
    g.e("v_cvt_f32_u32 v5, v7")
    g.e(f"v_mul_f32 v5, 0x{f2u(1/32):08x}, v5")
    gen_tw(g, TW2, 5, range(1, 8), 6)
    g.e("v_cvt_f32_u32 v5, v8")
    g.e(f"v_mul_f32 v5, 0x{f2u(1/512):08x}, v5")
    for q in range(4):
        g.e(f"v_add_f32 v6, 0x{f2u(q/8):08x}, v5")
        g.e(f"v_cos_f32 v{TWS[q]}, v6")
        g.e(f"v_sin_f32 v{TWS[q]+1}, -v6")
    g.e(f"v_mul_u32_u24 v15, {F_RS}, v14")
    g.e(f"v_add_u32 v15, {LDS_F}, v15")
    g.e("v_lshl_add_u32 v10, v8, 5, v15")
    g.e("v_lshl_add_u32 v15, v9, 5, v15")
    E, D, Tt = 34, 36, 38
    ZA = [144, 146, 148, 150]; ZB = [152, 154, 156, 158]
    g.e("s_waitcnt vmcnt(0)")
    wait(g, 3, "c")
    for q in range(4):
        g.e(f"buffer_load_dwordx2 {P(XA[q])}, v13, s[16:19], s{40+q} offen{SC}")
        g.e(f"buffer_load_dwordx2 {P(XB[q])}, v11, s[16:19], s{40+q} offen{SC}")
    g.e("s_waitcnt vmcnt(0)")
    g.e("s_mov_b64 vcc, s[56:57]")
    g.e("s_mov_b64 s[50:51], exec")
    g.e("s_andn2_b64 exec, exec, vcc")
    for q in range(4):
        merge_pair(g, XA[q], XB[3-q], P(TWS[q]), E, D, Tt, ZA[q], ZB[3-q])
    g.e("s_and_b64 exec, s[50:51], vcc")
    g.e("s_cbranch_execz l3_nospecial")
    g.e(f"v_mov_b32 v{XN}, v{XA[0]+1}")
    g.e(f"v_mov_b32 v{XA[0]+1}, 0")
    g.e(f"v_mov_b32 v{XN+1}, 0")
    pairs = [(XA[0], XN, 0, ZA[0], 160), (XA[1], XA[3], 64, ZA[1], ZA[3]), (XA[2], XA[2], 128, ZA[2], 160),
             (XB[0], XB[3], 32, ZB[0], ZB[3]), (XB[1], XB[2], 96, ZB[1], ZB[2])]
    for (a, b, k, oa, ob) in pairs:
        const_tw(g, 52, k, 512)
        merge_pair(g, a, b, "s[52:53]", E, D, Tt, oa, ob)
    g.lab("l3_nospecial")
    g.e("s_mov_b64 exec, s[50:51]")
    YA, f0 = dft4(g, ZA, [16, 18], +1)
    YB, f1 = dft4(g, ZB, [20, 22], +1)
    for t0 in range(4):
        g.e(f"ds_write_b64 v10, {P(YA[t0])} offset:{8*t0}")
        g.e(f"ds_write_b64 v15, {P(YB[t0])} offset:{8*t0}")
    g.e("s_waitcnt lgkmcnt(0)")
    g.e("s_barrier")
    g.e("v_bfe_u32 v11, v0, 2, 3")
    g.e(f"v_mul_u32_u24 v13, {F_RS}, v2")
    g.e("v_lshl_add_u32 v13, v11, 5, v13")
    g.e("v_lshl_add_u32 v13, v7, 3, v13")
    g.e(f"v_add_u32 v13, {LDS_F}, v13")
    Z = [16+2*j for j in range(8)]; T = [32, 34, 36, 38]
    for p in range(8):
        g.e(f"ds_read_b64 {P(Z[p])}, v13 offset:{256*p}")
    g.e("v_mul_u32_u24 v9, 2304, v2")
    g.e("v_lshl_add_u32 v10, v1, 3, v9")
    g.e("v_mul_u32_u24 v12, 288, v11")
    g.e("v_add_u32 v12, v12, v9")
    g.e("v_lshl_add_u32 v12, v7, 3, v12")
    g.e("s_waitcnt lgkmcnt(0)")
    for p in range(1, 8):
        cmul(g, Z[p], Z[p], TW2[p-1], T[0], conj=True)
    y, free = dft8(g, Z, T, +1, KS)
    for t1 in range(8):
        g.e(f"ds_write_b64 v12, {P(y[t1])} offset:{32*t1}")
    allr = y + free; x = allr[:8]; T2 = allr[8:]
    for r in range(8):
        g.e(f"ds_read_b64 {P(x[r])}, v10 offset:{288*r}")
    g.e("s_waitcnt lgkmcnt(0)")
    for r in range(1, 8):
        cmul(g, x[r], x[r], TW1[r-1], T2[0], conj=True)
    y, free = dft8(g, x, T2, +1, KS)
    g.e(f"s_mov_b32 s62, 0x{f2u(2.0**-21):08x}")
    g.e(f"s_mov_b32 s63, 0x{f2u(2.0**-21):08x}")
    tp = 124
    g.e("v_mul_u32_u24 v13, 2304, v2")
    g.e("v_lshl_add_u32 v13, v1, 2, v13")
    for j in range(8):
        r = y[j]
        g.e(f"v_pk_mul_f32 {P(r)}, {P(r)}, s[62:63]")
        round_pair(g, r, tp)
        g.e(f"v_pk_mul_f32 {P(r)}, {P(r)}, {P(GA[j])}")
        round_pair(g, r, tp)
        g.e(f"v_lshlrev_b32 v{tp+2}, 16, v{XR[j]}")
        g.e(f"v_and_b32 v{tp+3}, 0xffff0000, v{XR[j]}")
        g.e(f"v_pk_add_f32 {P(r)}, {P(r)}, {P(tp+2)}")
        round_pair(g, r, tp)
        g.e(f"ds_write_b32 v13, v{tp} offset:{128*j}")
    ln_mod(g, y, SCm, SH, 120, 121, 122, 123, 124)
    for j in range(8):
        g.e(f"v_cvt_pk_bf16_f32 v{XR[j]}, v{y[j]}, v{y[j]+1}")
        g.e(f"ds_write_b32 v13, v{XR[j]} offset:{1040+128*j}")
    g.e("s_waitcnt lgkmcnt(0)")
    g.e("s_barrier")
    g.e("v_and_b32 v14, 7, v0")
    g.e("v_lshrrev_b32 v8, 3, v0")
    g.e("v_mul_u32_u24 v13, 2304, v14")
    g.e("v_lshl_add_u32 v13, v8, 4, v13")
    g.e("ds_read_b128 v[16:19], v13")
    g.e("ds_read_b128 v[20:23], v13 offset:512")
    g.e("ds_read_b128 v[24:27], v13 offset:1040")
    g.e("ds_read_b128 v[28:31], v13 offset:1552")
    g.e("s_lshl_b32 s3, s71, 13")
    g.e("v_lshl_add_u32 v10, v14, 10, s3")
    g.e("v_lshl_add_u32 v10, v8, 4, v10")
    g.e("s_lshr_b32 s3, s71, 1")
    g.e("s_lshl_b32 s3, s3, 14")
    g.e("s_and_b32 s47, s71, 1")
    g.e("s_lshl_b32 s47, s47, 7")
    g.e("s_add_u32 s3, s3, s47")
    g.e("v_lshl_add_u32 v11, v8, 8, s3")
    g.e("v_lshl_add_u32 v11, v14, 4, v11")
    g.e("s_movk_i32 s47, 8192")
    g.e("s_waitcnt lgkmcnt(0)")
    st_dual(g, "buffer_store_dwordx4 v[16:19], v10, s[20:23], 0 offen")
    st_dual(g, "buffer_store_dwordx4 v[20:23], v10, s[20:23], 0 offen offset:512")
    st_dual(g, "buffer_store_dwordx4 v[24:27], v11, s[24:27], 0 offen")
    st_dual(g, "buffer_store_dwordx4 v[28:31], v11, s[24:27], s47 offen")

WOFF = 36864
def g1_prefetch(g):
    g.e("s_bfe_u32 s20, s71, 0x40001")
    g.e("v_and_b32 v2, 63, v0")
    srd(g, 12, 4, WS_W1P, 16*16*7*1024)
    g.e("v_lshlrev_b32 v7, 4, v2")
    g.e("s_mul_i32 s25, s20, 114688")
    g.e("s_sub_u32 s26, s95, 4")
    g.e("s_lshl_b32 s26, s26, 10")
    g.e("s_add_u32 s25, s25, s26")
    g.e(f"s_add_u32 s27, s26, {WOFF}")
    for i in range(28):
        g.e("s_mov_b32 m0, s27")
        g.e("s_add_u32 s27, s27, 4096")
        g.e(f"buffer_load_dwordx4 v7, s[12:15], s25 offen lds")
        g.e("s_add_u32 s25, s25, 4096")

def phase_g1(g):
    g.e("s_lshr_b32 s21, s71, 5")
    g.e("s_lshl_b32 s21, s21, 1")
    g.e("s_and_b32 s20, s71, 1")
    g.e("s_add_u32 s21, s21, s20")
    g.e("s_bfe_u32 s20, s71, 0x40001")
    g.e("s_and_b32 s22, s95, 3")
    g.e("s_lshr_b32 s34, s95, 2")
    g.e("v_and_b32 v2, 63, v0")
    g.e("v_and_b32 v3, 15, v0")
    g.e("v_bfe_u32 v4, v0, 4, 2")
    srd(g, 8, 4, WS_H2, 2048*1024)
    srd(g, 16, 4, WS_HID, 128*56*1024)
    g.e("s_lshl_b32 s23, s21, 3")
    g.e("s_lshl_b32 s24, s22, 1")
    g.e("s_add_u32 s23, s23, s24")
    g.e("s_lshl_b32 s23, s23, 14")
    g.e("v_lshl_add_u32 v5, v2, 4, s23")
    g.e("v_add_u32 v6, 16384, v5")
    g.e("v_lshlrev_b32 v7, 4, v2")
    g.e("s_lshl_b32 s35, s34, 12")
    g.e(f"s_add_u32 s35, s35, {WOFF}")
    g.e("v_add_u32 v7, s35, v7")
    g.e("v_add_u32 v8, 57344, v7")
    HB = [[64 + (mf*16+ks)*4 for ks in range(16)] for mf in range(2)]
    ACC = [[224 + (mf*4+nf)*4 for nf in range(4)] for mf in range(2)]
    ACC = [[192 + (mf*4+nf)*4 for nf in range(4)] for mf in range(2)]
    for i in range(32):
        g.e(f"v_mov_b32 v{192+i}, 0")
    g.e("v_lshrrev_b32 v9, 1, v4")
    g.e("v_lshlrev_b32 v9, 8, v9")
    g.e("v_lshl_add_u32 v9, v3, 4, v9")
    g.e("v_and_b32 v10, 1, v4")
    g.e("v_mul_u32_u24 v10, 57344, v10")
    g.e("v_add_u32 v9, v9, v10")
    g.e("s_lshl_b32 s28, s21, 3")
    g.e("s_lshl_b32 s29, s22, 1")
    g.e("s_add_u32 s28, s28, s29")
    g.e("s_mul_i32 s28, s28, 57344")
    g.e("s_mul_i32 s30, s20, 7")
    g.e("s_lshl_b32 s29, s34, 2")
    g.e("s_add_u32 s30, s30, s29")
    g.e(f"s_mov_b32 s40, 0x{f2u(-math.log2(math.e)):08x}")
    g.e(f"s_mov_b32 s41, 0x{f2u(-math.log2(math.e)):08x}")
    g.e("s_movk_i32 s45, 4096")
    g.e("s_movk_i32 s46, 8192")
    g.e("s_movk_i32 s47, 12288")
    g.e("s_mov_b32 s42, 1.0")
    g.e("s_mov_b32 s43, 1.0")
    g.e("s_waitcnt vmcnt(0)")
    wait(g, 4, "d")
    for ks in range(16):
        so = "0" if ks < 4 else f"s{44+ks//4}"
        g.e(f"buffer_load_dwordx4 v[{HB[0][ks]}:{HB[0][ks]+3}], v5, s[8:11], {so} offen offset:{1024*(ks%4)}")
        g.e(f"buffer_load_dwordx4 v[{HB[1][ks]}:{HB[1][ks]+3}], v6, s[8:11], {so} offen offset:{1024*(ks%4)}")
    if PROFILE:
        g.e("s_waitcnt vmcnt(0)")
        g.e("s_memrealtime s[88:89]")
        g.e("s_waitcnt lgkmcnt(0)")
        g.e("v_writelane_b32 v248, s88, 19")
    def epi(nf):
        L = []
        for mf in range(2):
            a = ACC[mf][nf]
            o = 16 + 8*mf
            for h in (0, 2):
                L.append(f"v_cvt_pk_bf16_f32 v{o+4}, v{a+h}, v{a+h+1}")
                L.append(f"v_lshlrev_b32 v{o+h}, 16, v{o+4}")
                L.append(f"v_and_b32 v{o+h+1}, 0xffff0000, v{o+4}")
            L.append(f"v_pk_mul_f32 {P(o+4)}, {P(o)}, s[40:41]")
            L.append(f"v_pk_mul_f32 {P(o+6)}, {P(o+2)}, s[40:41]")
            for i in range(4):
                L.append(f"v_exp_f32 v{o+4+i}, v{o+4+i}")
            L.append(f"v_pk_add_f32 {P(o+4)}, {P(o+4)}, s[42:43]")
            L.append(f"v_pk_add_f32 {P(o+6)}, {P(o+6)}, s[42:43]")
            for i in range(4):
                L.append(f"v_rcp_f32 v{o+4+i}, v{o+4+i}")
            L.append(f"v_pk_mul_f32 {P(o)}, {P(o)}, {P(o+4)}")
            L.append(f"v_pk_mul_f32 {P(o+2)}, {P(o+2)}, {P(o+6)}")
            L.append(f"v_cvt_pk_bf16_f32 v{12+2*mf}, v{o}, v{o+1}")
            L.append(f"v_cvt_pk_bf16_f32 v{13+2*mf}, v{o+2}, v{o+3}")
        L.append(f"s_add_u32 s31, s30, {nf}")
        L.append("s_lshr_b32 s32, s31, 1")
        L.append("s_lshl_b32 s32, s32, 10")
        L.append("s_and_b32 s33, s31, 1")
        L.append("s_lshl_b32 s33, s33, 9")
        L.append("s_add_u32 s32, s32, s33")
        L.append("s_add_u32 s32, s32, s28")
        L.append("v_permlane16_swap_b32 v12, v14")
        L.append("v_permlane16_swap_b32 v13, v15")
        L.append("s_nop 0")
        L.append(("dual", "buffer_store_dwordx4 v[12:15], v9, s[16:19], s32 offen"))
        L.append("s_nop 1")
        return L
    def emit(l):
        if isinstance(l, tuple):
            st_dual(g, l[1])
        else:
            g.e(l)
    def body(NNF, tag, first):
        steps = [(nf, ks) for nf in range(NNF) for ks in range(16)]
        NS = len(steps); AH = 6
        def wr(si):
            return 224 + (si % 6)*4 if False else 40 + (si % 6)*4
        def rd(si):
            nf, ks = steps[si]
            base = "v7" if ks < 8 else "v8"
            off = (ks*7+nf)*1024 - (0 if ks < 8 else 57344)
            g.e(f"ds_read_b128 v[{wr(si)}:{wr(si)+3}], {base} offset:{off}")
        AH = 5
        for si in range(AH):
            rd(si)
        pend = []
        for si, (nf, ks) in enumerate(steps):
            if si + AH < NS:
                rd(si+AH)
            lg = min(AH, NS-1-si)
            if nf == 0:
                g.e(f"s_waitcnt vmcnt({2*(15-ks)}) lgkmcnt({lg})")
            else:
                g.e(f"s_waitcnt lgkmcnt({lg})")
            for mf in range(2):
                a = ACC[mf][nf]
                g.e(f"v_mfma_f32_16x16x32_bf16 v[{a}:{a+3}], v[{wr(si)}:{wr(si)+3}], v[{HB[mf][ks]}:{HB[mf][ks]+3}], v[{a}:{a+3}]")
            if ks == 15 and PROFILE:
                g.e("s_memrealtime s[88:89]")
                g.e("s_waitcnt lgkmcnt(0)")
                g.e(f"v_writelane_b32 v248, s88, {20+nf}")
            if ks == 4 and nf > 0:
                pend = epi(nf-1)
            for _ in range(5):
                if pend:
                    emit(pend.pop(0))
        while pend:
            emit(pend.pop(0))
        g.e("s_nop 15")
        for l in epi(NNF-1):
            emit(l)
    g.e("s_cmp_lg_u32 s34, 0")
    g.e("s_cbranch_scc1 g1_cg1")
    body(4, "a", True)
    g.e("s_branch g1_end")
    g.lab("g1_cg1")
    body(3, "b", False)
    g.lab("g1_end")

def wreg(ks, nf):
    return 80 + (ks*4+nf)*4

def g2_prefetch(g):
    g.e("s_load_dwordx2 s[6:7], s[0:1], 64")
    g.e("s_bfe_u32 s20, s71, 0x30002")
    g.e("s_lshr_b32 s21, s71, 5")
    g.e("s_lshl_b32 s21, s21, 2")
    g.e("s_and_b32 s22, s71, 3")
    g.e("s_add_u32 s21, s21, s22")
    g.e("v_and_b32 v2, 63, v0")
    g.e("v_and_b32 v3, 15, v0")
    g.e("v_bfe_u32 v4, v0, 4, 2")
    g.e("s_waitcnt lgkmcnt(0)")
    srd(g, 8, 4, WS_HID, 128*56*1024)
    srd(g, 12, 4, WS_W2P, 8*56*4*1024)
    srd(g, 16, 6, 0, 2048*1024)
    srd(g, 80, 4, WS_X1, 2048*1024)
    srd(g, 84, 4, WS_MOD, 3072*4)
    g.e("v_lshlrev_b32 v7, 4, v2")
    g.e("s_mul_i32 s23, s95, 7")
    g.e("s_mul_i32 s24, s20, 56")
    g.e("s_add_u32 s24, s24, s23")
    g.e("s_lshl_b32 s24, s24, 12")
    for mf in range(4):
        g.e(f"s_lshl_b32 s{32+mf}, s21, 2")
        g.e(f"s_add_u32 s{32+mf}, s{32+mf}, {mf}")
        g.e(f"s_mul_i32 s{32+mf}, s{32+mf}, 56")
        g.e(f"s_add_u32 s{32+mf}, s{32+mf}, s23")
        g.e(f"s_lshl_b32 s{32+mf}, s{32+mf}, 10")
    for ks in range(7):
        for nf in range(4):
            w = wreg(ks, nf)
            g.e(f"buffer_load_dwordx4 v[{w}:{w+3}], v7, s[12:15], s24 offen offset:{1024*nf}")
        g.e("s_add_u32 s24, s24, 4096")

def phase_g2(g):
    HD = 3
    def hreg(ks, mf):
        return 192 + ((ks % HD)*4+mf)*4
    for i in range(64):
        g.e(f"v_mov_b32 v{16+i}, 0")
    g.e("s_waitcnt vmcnt(0)")
    wait(g, 5, "e")
    def issue_h(ks):
        for mf in range(4):
            h = hreg(ks, mf)
            g.e(f"buffer_load_dwordx4 v[{h}:{h+3}], v7, s[8:11], s{32+mf} offen")
            g.e(f"s_add_u32 s{32+mf}, s{32+mf}, 1024")
    for ks in range(HD):
        issue_h(ks)
    for ks in range(7):
        after = min(7, ks+HD) - (ks+1)
        g.e(f"s_waitcnt vmcnt({4*after})")
        for mf in range(4):
            for nf in range(4):
                a = 16 + (mf*4+nf)*4
                w = wreg(ks, nf); h = hreg(ks, mf)
                g.e(f"v_mfma_f32_16x16x32_bf16 v[{a}:{a+3}], v[{w}:{w+3}], v[{h}:{h+3}], v[{a}:{a+3}]")
        if ks + HD < 7:
            issue_h(ks+HD)
    g.e("s_lshr_b32 s25, s95, 1")
    g.e("s_and_b32 s26, s95, 1")
    g.e("s_lshl_b32 s27, s20, 7")
    g.e("v_lshl_add_u32 v11, v4, 3, s27")
    g.e("s_lshl_b32 s31, s26, 6")
    g.e("v_add_u32 v11, s31, v11")
    g.e("v_lshlrev_b32 v12, 1, v11")
    g.e("s_movk_i32 s28, 10240")
    g.e("s_lshl_b32 s30, s21, 6")
    g.e("s_lshl_b32 s31, s25, 4")
    g.e("s_add_u32 s30, s30, s31")
    g.e("v_add_u32 v10, s30, v3")
    g.e("v_lshlrev_b32 v10, 10, v10")
    g.e("v_add_u32 v10, v10, v11")
    for nf in range(2):
        g.e(f"buffer_load_dwordx4 v[{80+4*nf}:{83+4*nf}], v12, s[84:87], s28 offen offset:{64*nf}")
        g.e(f"buffer_load_dwordx2 v[{88+2*nf}:{89+2*nf}], v10, s[80:83], 0 offen offset:{32*nf}")
    g.e("s_nop 7")
    g.e("s_lshl_b32 s29, s95, 14")
    g.e("v_add_u32 v8, s29, v7")
    for f in range(16):
        g.e(f"ds_write_b128 v8, v[{16+4*f}:{19+4*f}] offset:{1024*f}")
    g.e("s_waitcnt lgkmcnt(0)")
    g.e("s_barrier")
    g.e("s_lshl_b32 s27, s25, 12")
    g.e("s_lshl_b32 s29, s26, 11")
    g.e("s_add_u32 s27, s27, s29")
    g.e("v_add_u32 v8, s27, v7")
    g.e("v_add_u32 v9, 65536, v8")
    for p in range(8):
        base = "v8" if p < 4 else "v9"
        for nf in range(2):
            g.e(f"ds_read_b128 v[{96+8*p+4*nf}:{99+8*p+4*nf}], {base} offset:{16384*(p%4)+1024*nf}")
    g.e("s_waitcnt lgkmcnt(0)")
    for st in (4, 2, 1):
        for p in range(st):
            for i in range(0, 8, 2):
                g.e(f"v_pk_add_f32 {P(96+8*p+i)}, {P(96+8*p+i)}, {P(96+8*(p+st)+i)}")
    g.e("s_waitcnt vmcnt(0)")
    for nf in range(2):
        for h in range(2):
            r = 96+4*nf+2*h
            round_pair(g, r, 12)
            g.e(f"v_pk_mul_f32 {P(r)}, {P(r)}, {P(80+4*nf+2*h)}")
            round_pair(g, r, 12)
            g.e(f"v_lshlrev_b32 v14, 16, v{88+2*nf+h}")
            g.e(f"v_and_b32 v15, 0xffff0000, v{88+2*nf+h}")
            g.e(f"v_pk_add_f32 {P(r)}, {P(r)}, {P(14)}")
            g.e(f"v_cvt_pk_bf16_f32 v{112+2*nf+h}, v{r}, v{r+1}")
        g.e(f"buffer_store_dwordx2 v[{112+2*nf}:{113+2*nf}], v10, s[16:19], 0 offen offset:{32*nf}")

def main(out_path):
    g = G()
    name = NAME + "_kernel"
    g.raw(f".globl {name}")
    g.raw(".p2align 8")
    g.raw(f".type {name},@function")
    g.raw(f"{name}:")
    g.e("s_getpc_b64 s[86:87]")
    g.e("s_cmp_ge_u32 s2, 256")
    g.e("s_cbranch_scc1 k_done")
    g.e("s_load_dwordx2 s[4:5], s[0:1], 80")
    g.e("s_load_dwordx2 s[90:91], s[0:1], 72")
    g.e("s_load_dwordx4 s[8:11], s[0:1], 48")
    g.e("v_lshrrev_b32 v1, 6, v0")
    g.e("s_nop 0")
    g.e("v_readfirstlane_b32 s95, v1")
    g.e("s_waitcnt lgkmcnt(0)")
    task_mod_issue(g)
    srd(g, 96, 90, 0, 256)
    srd(g, 76, 4, WS_FLAG, 256*64)
    g.e("s_lshl_b32 s94, s2, 6")
    g.e("v_mov_b32 v255, s94")
    g.e("v_mov_b32 v254, 0")
    g.e("buffer_store_dword v254, v255, s[76:79], 0 offen sc1")
    srd(g, 64, 4, WS_FLAG2, 256*64)
    g.e("buffer_store_dword v254, v255, s[64:67], 0 offen sc1")
    g.e("s_cmp_lg_u32 s95, 0")
    g.e("s_cbranch_scc1 no_rank")
    rank_issue(g)
    g.lab("no_rank")
    if PROFILE:
        srd(g, 72, 4, WS_PROF, 256*1024)
    stamp(g)
    task_mod(g)
    g.e("s_cmp_ge_u32 s95, 4")
    g.e("s_cbranch_scc1 helper")
    arrive(g, 1, "a")
    l1_prefetch(g)
    stamp(g)
    g.e("s_cmp_lt_u32 s2, 48")
    g.e("s_cbranch_scc1 m_nowt")
    g.e("s_sub_u32 s70, s2, 48")
    task_wt(g, 70, "m")
    g.lab("m_nowt")
    stamp(g)
    phase_l1(g)
    stamp(g)
    arrive(g, 2, "b")
    stamp(g)
    phase_l2(g)
    stamp(g)
    arrive(g, 3, "c")
    stamp(g)
    phase_l3(g)
    stamp(g)
    arrive(g, 4, "d")
    g.e("s_branch join")
    g.lab("helper")
    g.e("v_subrev_u32 v0, 256, v0")
    if CODEPF:
        g.e(f"s_cmp_ge_u32 s2, {CODEPF}")
        g.e("s_cbranch_scc1 h_nopf")
        g.e("s_mov_b32 s8, s86")
        g.e("s_mov_b32 s9, s87")
        g.e(f"s_mov_b32 s10, k_done-{name}-4")
        g.e("s_mov_b32 s11, 0x00020000")
        g.e("v_lshlrev_b32 v1, 4, v0")
        g.e("s_mov_b32 s12, 0")
        for i in range(20):
            g.e(f"buffer_load_dwordx4 v[{16+4*i}:{19+4*i}], v1, s[8:11], s12 offen")
            g.e("s_add_u32 s12, s12, 4096")
        g.lab("h_nopf")
    if PRETOUCH:
        srd(g, 8, 4, 0, WS_END)
        g.e("v_lshlrev_b32 v1, 16, v0")
        g.e("buffer_load_dword v2, v1, s[8:11], 0 offen offset:128")
        g.e("s_mov_b32 s12, 0x1000000")
        g.e("buffer_load_dword v3, v1, s[8:11], s12 offen offset:128")
        g.e("s_waitcnt vmcnt(0)")
    g.e("s_cmp_lt_u32 s2, 48")
    g.e("s_cbranch_scc1 h_nowt")
    g.e("s_cmp_ge_u32 s2, 96")
    g.e("s_cbranch_scc1 h_nowt")
    g.e("s_add_u32 s70, s2, 160")
    task_wt(g, 70, "a")
    g.lab("h_nowt")
    task_wab(g)
    g.e("s_barrier")
    g.e("s_barrier")
    g.e("s_waitcnt vmcnt(0)")
    g.e("s_barrier")
    task_w1(g)
    g.e("s_barrier")
    g.e("s_barrier")
    g.e("s_cmp_lg_u32 s2, 0")
    g.e("s_cbranch_scc1 h_nocol0")
    g.e("s_barrier")
    g.lab("h_nocol0")
    g.e("s_barrier")
    g.e("s_waitcnt vmcnt(0)")
    g.e("s_barrier")
    task_w2(g)
    g.e("s_barrier")
    g.e("v_add_u32 v0, 256, v0")
    lid_read(g)
    g.e("s_barrier")
    g1_prefetch(g)
    g.e("s_barrier")
    g.e("s_waitcnt vmcnt(0)")
    g.e("s_barrier")
    g.lab("join")
    stamp(g)
    phase_g1(g)
    stamp(g)
    g2_prefetch(g)
    arrive(g, 5, "e")
    stamp(g)
    phase_g2(g)
    stamp(g)
    if PROFILE:
        g.e("v_writelane_b32 v248, s71, 28")
        g.e("v_writelane_b32 v248, s69, 29")
        g.e("v_writelane_b32 v248, s68, 30")
    stamp_flush(g)
    g.lab("k_done")
    g.e("s_endpgm")
    hdr = open("cdna_kernels/" + NAME + ".s.ref").read().split("\n")
    head = []
    for l in hdr:
        if l.startswith("; Override"):
            break
        head.append(l)
    txt = "\n".join(head) + "\n"
    txt += f"; @launch grid=(256,1,1) block=(512,1,1) lds=151616\n"
    txt += '.amdgcn_target "amdgcn-amd-amdhsa--gfx950"\n.text\n'
    txt += "\n".join(g.L) + "\n"
    txt += '.section .rodata,"a"\n.p2align 6\n'
    txt += f""".amdhsa_kernel {name}
  .amdhsa_next_free_vgpr 256
  .amdhsa_next_free_sgpr 102
  .amdhsa_accum_offset 256
  .amdhsa_group_segment_fixed_size 0
  .amdhsa_kernarg_size 88
  .amdhsa_user_sgpr_count 2
  .amdhsa_user_sgpr_kernarg_segment_ptr 1
  .amdhsa_system_sgpr_workgroup_id_x 1
.end_amdhsa_kernel
"""
    open(out_path, "w").write(txt)

if __name__ == "__main__":
    if len(sys.argv) > 2 and sys.argv[2] == "prof":
        PROFILE = True
    main(sys.argv[1] if len(sys.argv) > 1 else "cdna_kernels/" + NAME + ".s")
```

```python
import sys, math, struct
from gen_multi import (G, P, f2u, cadd, csub, cadd_mi, cadd_pi, cadd_s, cmul, dft8, dft4, gen_tw, srd,
                       allreduce32, round_pair, round1, ln_mod, split_pair, merge_pair, const_tw, set_k, KS, NAME)

WS_MOD  = 0
WS_WAB  = 0x4000
WS_FLAG = 0xC000
WS_WT   = 0x10000
WS_W1P  = WS_WT + 256*8192
WS_W2P  = WS_W1P + 16*16*7*1024
WS_XD   = WS_W2P + 8*56*4*1024
WS_XD   = (WS_XD + 0xFFFF) & ~0xFFFF
WS_ZS   = WS_XD + 256*16384
WS_X1   = WS_ZS + 256*16384
WS_H2   = WS_X1 + 2048*1024
WS_HID  = WS_H2 + 2048*1024
WS_FLAG2 = WS_HID + 128*56*1024
WS_END  = WS_FLAG2 + 256*64

SC = ""
SCS = " sc1"

LDS_X1 = 0
LDS_F  = 8*2304
F_RS   = 2064
LDS_MIR = 16384 + 8*2304
LDS_LID = 151552
FORCE_SLOW = False
PRETOUCH = False
CODEPF = 16
POLLSLEEP = 3
DBGOUT = False

PROFILE = False
WS_PROF = WS_END
_pidx = [0]
def stamp(g):
    if not PROFILE:
        return
    i = _pidx[0]; _pidx[0] += 1
    g.e("s_memrealtime s[88:89]")
    g.e("s_waitcnt lgkmcnt(0)")
    g.e(f"v_writelane_b32 v248, s88, {i}")

def stamp_flush(g):
    if not PROFILE:
        return
    g.e("s_lshl_b32 s88, s2, 10")
    g.e("s_lshl_b32 s89, s95, 7")
    g.e("s_add_u32 s88, s88, s89")
    g.e("v_and_b32 v255, 63, v0")
    g.e("v_lshl_add_u32 v255, v255, 2, s88")
    g.e("s_mov_b64 exec, 0xffffffff")
    g.e("buffer_store_dword v248, v255, s[72:75], 0 offen")

_sid = [0]
def st_dual(g, instr):
    k = _sid[0]; _sid[0] += 1
    g.e("s_cmp_eq_u32 s69, 1")
    g.e(f"s_cbranch_scc1 sdf_{k}")
    g.e(instr + SCS)
    g.e(f"s_branch sde_{k}")
    g.lab(f"sdf_{k}")
    g.e(instr)
    g.lab(f"sde_{k}")

def arrive(g, val, tag):
    local = val >= 4
    g.e("s_waitcnt vmcnt(28) lgkmcnt(0)" if val == 5 else "s_waitcnt vmcnt(0) lgkmcnt(0)")
    if val == 5 and PROFILE:
        g.e("s_memrealtime s[88:89]")
        g.e("s_waitcnt lgkmcnt(0)")
        g.e("v_writelane_b32 v248, s88, 24")
    if val != 1:
        g.e("s_barrier")
    g.e("s_cmp_lg_u32 s95, 0")
    g.e(f"s_cbranch_scc1 arr_skip_{tag}")
    g.e("s_mov_b64 s[92:93], exec")
    g.e("s_mov_b64 exec, 1")
    if val == 1:
        g.e("s_and_b32 s94, s2, 3")
        g.e("s_lshl_b32 s94, s94, 6")
        g.e("v_mov_b32 v255, s94")
        g.e("v_mov_b32 v254, 1")
        g.e(f"buffer_atomic_add v254, v255, s[96:99], 0 offen sc1")
        g.e("s_cmp_ge_u32 s2, 16")
        g.e(f"s_cbranch_scc1 arr_no16")
        g.e("v_mov_b32 v255, 16")
        g.e(f"buffer_atomic_add v254, v255, s[96:99], 0 offen sc1")
        g.lab("arr_no16")
    elif not local:
        g.e("s_lshl_b32 s94, s2, 6")
        g.e("v_mov_b32 v255, s94")
        g.e(f"v_mov_b32 v254, {val}")
        g.e(f"buffer_store_dword v254, v255, s[76:79], 0 offen sc1")
    else:
        g.e("s_lshl_b32 s94, s71, 6")
        g.e("v_mov_b32 v255, s94")
        g.e(f"v_mov_b32 v254, {val}")
        st_dual(g, "buffer_store_dword v254, v255, s[64:67], 0 offen")
    g.e("s_mov_b64 exec, s[92:93]")
    g.lab(f"arr_skip_{tag}")

def wait(g, val, tag):
    local = val >= 4
    g.e("s_cmp_lg_u32 s95, 0")
    g.e(f"s_cbranch_scc1 wait_skip_{tag}")
    g.e("v_and_b32 v253, 63, v0")
    g.e("v_lshlrev_b32 v253, 6, v253")
    if val == 1:
        g.e("s_mov_b64 s[92:93], exec")
        g.e("s_mov_b64 exec, 1")
        g.e("v_mov_b32 v253, 16")
        g.lab(f"wait_loop_{tag}")
        g.e(f"buffer_load_dword v254, v253, s[96:99], 0 offen sc1")
        g.e("s_waitcnt vmcnt(0)")
        g.e("v_cmp_gt_u32 vcc, 16, v254")
        g.e("s_cmp_eq_u64 vcc, 0")
        g.e(f"s_cbranch_scc1 wait_out_{tag}")
        g.e("s_sleep 6")
        g.e(f"s_branch wait_loop_{tag}")
        g.lab(f"wait_out_{tag}")
        g.e("s_mov_b64 exec, s[92:93]")
    else:
        if val == 2:
            g.e("s_mov_b64 s[92:93], exec")
            g.e("s_mov_b64 exec, 15")
            g.lab(f"wait_loop0_{tag}")
            g.e(f"buffer_load_dword v254, v253, s[96:99], 0 offen sc1")
            g.e("s_waitcnt vmcnt(0)")
            g.e("v_cmp_gt_u32 vcc, 64, v254")
            g.e("s_cmp_eq_u64 vcc, 0")
            g.e(f"s_cbranch_scc0 wait_loop0_{tag}")
            g.e("s_mov_b64 exec, s[92:93]")
        sr = "s[64:67]" if local else "s[76:79]"
        if local:
            g.e("s_cmp_eq_u32 s69, 1")
            g.e(f"s_cbranch_scc0 wait_loop_{tag}")
            g.e("s_lshr_b32 s94, s71, 5")
            g.e("s_lshl_b32 s94, s94, 11")
            g.e("s_mov_b64 s[92:93], exec")
            g.e("s_mov_b64 exec, 0xffffffff")
            g.lab(f"wait_floop_{tag}")
            g.e(f"buffer_load_dword v254, v253, {sr}, s94 offen sc1")
            g.e("s_waitcnt vmcnt(0)")
            g.e(f"v_cmp_gt_u32 vcc, {val}, v254")
            g.e("s_cmp_eq_u64 vcc, 0")
            g.e(f"s_cbranch_scc0 wait_floop_{tag}")
            g.e("s_mov_b64 exec, s[92:93]")
            g.e(f"s_branch wait_skip_{tag}")
        g.lab(f"wait_loop_{tag}")
        for i in range(4):
            g.e(f"s_movk_i32 s94, {4096*i}")
            g.e(f"buffer_load_dword v{249+i}, v253, {sr}, s94 offen sc1")
        g.e("s_waitcnt vmcnt(0)")
        g.e("v_min_u32 v249, v249, v250")
        g.e("v_min_u32 v251, v251, v252")
        g.e("v_min_u32 v249, v249, v251")
        g.e(f"v_cmp_gt_u32 vcc, {val}, v249")
        g.e("s_cmp_eq_u64 vcc, 0")
        g.e(f"s_cbranch_scc1 wait_skip_{tag}")
        g.e(f"s_sleep {POLLSLEEP}")
        g.e(f"s_branch wait_loop_{tag}")
    g.lab(f"wait_skip_{tag}")
    g.e("s_barrier")
    stamp(g)

def rank_issue(g):
    g.e("s_getreg_b32 s68, hwreg(HW_REG_XCC_ID, 0, 4)")
    g.e("s_and_b32 s68, s68, 7")
    g.e("s_and_b32 s94, s68, 3")
    g.e("s_lshl_b32 s94, s94, 6")
    g.e("s_lshr_b32 s3, s68, 2")
    g.e("s_lshl_b32 s3, s3, 2")
    g.e("s_add_u32 s94, s94, s3")
    g.e("s_add_u32 s94, s94, 8")
    g.e("s_mov_b64 s[92:93], exec")
    g.e("s_mov_b64 exec, 1")
    g.e("v_mov_b32 v255, s94")
    g.e("v_mov_b32 v239, 1")
    g.e("buffer_atomic_add v239, v255, s[96:99], 0 offen sc0 sc1")
    g.e("s_mov_b64 exec, s[92:93]")

def rank_resolve(g):
    g.e("s_cmp_lg_u32 s95, 0")
    g.e("s_cbranch_scc1 rr_skip")
    g.e("v_and_b32 v253, 7, v0")
    g.e("v_and_b32 v254, 3, v253")
    g.e("v_lshlrev_b32 v254, 6, v254")
    g.e("v_lshrrev_b32 v253, 2, v253")
    g.e("v_lshl_add_u32 v254, v253, 2, v254")
    g.e("buffer_load_dword v253, v254, s[96:99], 0 offen offset:8 sc1")
    g.e("s_waitcnt vmcnt(0)")
    g.e("v_cmp_ne_u32 vcc, 32, v253")
    g.e("v_readfirstlane_b32 s3, v239")
    g.e("s_lshl_b32 s94, s68, 5")
    g.e("s_add_u32 s94, s94, s3")
    g.e("s_cmp_eq_u64 vcc, 0")
    g.e("s_cselect_b32 s3, 1, 0")
    if FORCE_SLOW:
        g.e("s_mov_b32 s3, 0")
    g.e("s_cmp_eq_u32 s3, 1")
    g.e("s_cselect_b32 s94, s94, s2")
    g.e("v_mov_b32 v254, s94")
    g.e("v_mov_b32 v255, s3")
    g.e(f"v_mov_b32 v252, {LDS_LID}")
    g.e("ds_write_b64 v252, v[254:255]")
    g.lab("rr_skip")

def lid_read(g):
    g.e(f"v_mov_b32 v252, {LDS_LID}")
    g.e("ds_read_b64 v[254:255], v252")
    g.e("s_waitcnt lgkmcnt(0)")
    g.e("v_readfirstlane_b32 s71, v254")
    g.e("v_readfirstlane_b32 s69, v255")
    g.e("s_nop 3")

def task_mod_issue(g):
    g.e("s_cmp_ge_u32 s2, 48")
    g.e("s_cbranch_scc1 modi_end")
    g.e("v_lshrrev_b32 v1, 3, v0")
    g.e("v_and_b32 v2, 7, v0")
    g.e("v_lshlrev_b32 v3, 1, v1")
    g.e("s_movk_i32 s24, 6144")
    g.e("v_mul_lo_u32 v4, v1, s24")
    g.e("s_lshl_b32 s25, s2, 7")
    g.e("v_lshl_add_u32 v4, v2, 4, v4")
    g.e("v_add_u32 v4, s25, v4")
    srd(g, 12, 8, 0, 1024)
    srd(g, 16, 10, 0, 512*6144)
    srd(g, 20, 4, WS_MOD, 3072*4)
    for i in range(8):
        g.e(f"buffer_load_ushort v{16+i}, v3, s[12:15], 0 offen offset:{128*i}")
    g.e("s_mov_b32 s26, 0")
    for i in range(8):
        g.e(f"buffer_load_dwordx4 v[{32+4*i}:{35+4*i}], v4, s[16:19], s26 offen")
        g.e(f"s_add_u32 s26, s26, {64*6144}")
    g.lab("modi_end")

def task_mod(g):
    g.e("s_cmp_ge_u32 s2, 48")
    g.e("s_cbranch_scc1 mod_end")
    for i in range(8):
        g.e(f"v_mov_b32 v{8+i}, 0")
    g.e("s_waitcnt vmcnt(0)")
    for i in range(8):
        r = 16+i
        g.e(f"v_lshlrev_b32 v{r}, 16, v{r}")
        g.e(f"v_mul_f32 v{24+i}, 0x{f2u(-math.log2(math.e)):08x}, v{r}")
    for i in range(8):
        g.e(f"v_exp_f32 v{24+i}, v{24+i}")
    for i in range(8):
        g.e(f"v_add_f32 v{24+i}, 1.0, v{24+i}")
    for i in range(8):
        g.e(f"v_rcp_f32 v{24+i}, v{24+i}")
    for i in range(8):
        g.e(f"v_mul_f32 v{16+i}, v{16+i}, v{24+i}")
    for i in range(8):
        round1(g, 16+i)
    for i in range(8):
        g.e(f"v_mov_b32 v7, v{16+i}")
        g.e(f"v_mov_b32 v6, v{16+i}")
        for q in range(4):
            w = 32+4*i+q
            g.e(f"v_lshlrev_b32 v4, 16, v{w}")
            g.e(f"v_and_b32 v5, 0xffff0000, v{w}")
            g.e(f"v_pk_fma_f32 {P(8+2*q)}, {P(4)}, {P(6)}, {P(8+2*q)}")
    g.e("v_lshlrev_b32 v5, 8, v1")
    g.e("v_lshl_add_u32 v5, v2, 5, v5")
    g.e("ds_write_b128 v5, v[8:11]")
    g.e("ds_write_b128 v5, v[12:15] offset:16")
    g.e("s_waitcnt lgkmcnt(0)")
    g.e("s_barrier")
    g.e("s_cmp_lg_u32 s95, 0")
    g.e("s_cbranch_scc1 mod_end")
    g.e("v_lshlrev_b32 v5, 2, v0")
    for i in range(64):
        g.e(f"ds_read_b32 v{32+i}, v5 offset:{256*i}")
    g.e("s_waitcnt lgkmcnt(0)")
    for st in (32, 16, 8, 4, 2):
        for i in range(0, st, 2):
            g.e(f"v_pk_add_f32 {P(32+i)}, {P(32+i)}, {P(32+i+st)}")
    g.e("v_add_f32 v32, v32, v33")
    round1(g, 32)
    g.e("s_lshr_b32 s26, s2, 3")
    g.e("s_cmp_eq_u32 s26, 1")
    g.e("s_cselect_b32 s27, 1, 0")
    g.e("s_cmp_eq_u32 s26, 4")
    g.e("s_cselect_b32 s27, 1, s27")
    g.e("s_cmp_eq_u32 s27, 0")
    g.e("s_cbranch_scc1 mod_st")
    g.e("v_add_f32 v32, 1.0, v32")
    round1(g, 32)
    g.lab("mod_st")
    g.e("s_lshl_b32 s26, s2, 8")
    g.e("v_add_u32 v5, s26, v5")
    g.e(f"buffer_store_dword v32, v5, s[20:23], 0 offen{SCS}")
    g.lab("mod_end")

def task_w1(g):
    g.e("s_load_dwordx2 s[8:9], s[0:1], 32")
    g.e("s_waitcnt lgkmcnt(0)")
    srd(g, 12, 8, 0, 512*3584)
    srd(g, 16, 4, WS_W1P, 16*16*7*1024)
    g.e("s_and_b32 s25, s2, 15")
    g.e("s_lshr_b32 s26, s2, 4")
    g.e("s_movk_i32 s27, 224")
    g.e("v_cmp_gt_u32 vcc, s27, v0")
    g.e("s_and_saveexec_b64 s[28:29], vcc")
    g.e("s_cbranch_execz w1_end")
    g.e("v_and_b32 v1, 7, v0")
    g.e("v_bfe_u32 v2, v0, 3, 2")
    g.e("v_lshrrev_b32 v3, 5, v0")
    g.e("s_lshl_b32 s27, s26, 5")
    g.e("v_lshl_add_u32 v4, v2, 3, s27")
    g.e("s_movk_i32 s30, 3584")
    g.e("v_mul_lo_u32 v4, v4, s30")
    g.e("s_mul_i32 s31, s25, 224")
    g.e("v_lshl_add_u32 v5, v3, 5, s31")
    g.e("v_lshl_add_u32 v5, v1, 2, v5")
    g.e("v_add_u32 v4, v4, v5")
    g.e("s_mov_b32 s32, 0")
    for e in range(8):
        g.e(f"buffer_load_dword v{8+e}, v4, s[12:15], s32 offen")
        g.e(f"s_add_u32 s32, s32, 3584")
    g.e("s_lshl_b32 s33, s25, 4")
    g.e("s_add_u32 s33, s33, s26")
    g.e("s_mul_i32 s33, s33, 7168")
    g.e("v_lshl_add_u32 v6, v3, 10, s33")
    g.e("v_lshl_add_u32 v6, v2, 8, v6")
    g.e("v_lshl_add_u32 v6, v1, 5, v6")
    g.e("s_mov_b32 s34, 0x05040100")
    g.e("s_mov_b32 s35, 0x07060302")
    g.e("s_waitcnt vmcnt(0)")
    for q in range(4):
        g.e(f"v_perm_b32 v{16+q}, v{9+2*q}, v{8+2*q}, s34")
        g.e(f"v_perm_b32 v{20+q}, v{9+2*q}, v{8+2*q}, s35")
    g.e(f"buffer_store_dwordx4 v[16:19], v6, s[16:19], 0 offen{SCS}")
    g.e(f"buffer_store_dwordx4 v[20:23], v6, s[16:19], 0 offen offset:16{SCS}")
    g.lab("w1_end")
    g.e("s_mov_b64 exec, s[28:29]")

def task_w2(g):
    g.e("s_cmp_ge_u32 s2, 224")
    g.e("s_cbranch_scc1 w2_end")
    g.e("s_load_dwordx2 s[8:9], s[0:1], 40")
    g.e("s_waitcnt lgkmcnt(0)")
    srd(g, 12, 8, 0, 1792*1024)
    srd(g, 16, 4, WS_W2P, 8*56*4*1024)
    g.e("s_and_b32 s25, s2, 7")
    g.e("s_lshr_b32 s26, s2, 3")
    g.e("v_and_b32 v1, 7, v0")
    g.e("v_bfe_u32 v2, v0, 3, 2")
    g.e("v_bfe_u32 v3, v0, 5, 2")
    g.e("v_lshrrev_b32 v7, 7, v0")
    g.e("s_lshl_b32 s27, s26, 1")
    g.e("v_add_u32 v7, s27, v7")
    g.e("v_lshlrev_b32 v4, 5, v7")
    g.e("v_lshl_add_u32 v4, v2, 3, v4")
    g.e("v_lshlrev_b32 v4, 10, v4")
    g.e("s_lshl_b32 s31, s25, 7")
    g.e("v_lshl_add_u32 v5, v3, 5, s31")
    g.e("v_lshl_add_u32 v5, v1, 2, v5")
    g.e("v_add_u32 v4, v4, v5")
    g.e("s_movk_i32 s36, 4096")
    for e in range(8):
        g.e(f"buffer_load_dword v{8+e}, v4, s[12:15], 0 offen offset:{1024*e}" if e < 4 else
            f"buffer_load_dword v{8+e}, v4, s[12:15], s36 offen offset:{1024*(e-4)}")
    g.e("s_mul_i32 s33, s25, 56")
    g.e("v_add_u32 v6, s33, v7")
    g.e("v_lshlrev_b32 v6, 12, v6")
    g.e("v_lshl_add_u32 v6, v3, 10, v6")
    g.e("v_lshl_add_u32 v6, v2, 8, v6")
    g.e("v_lshl_add_u32 v6, v1, 5, v6")
    g.e("s_mov_b32 s34, 0x05040100")
    g.e("s_mov_b32 s35, 0x07060302")
    g.e("s_waitcnt vmcnt(0)")
    for q in range(4):
        g.e(f"v_perm_b32 v{16+q}, v{9+2*q}, v{8+2*q}, s34")
        g.e(f"v_perm_b32 v{20+q}, v{9+2*q}, v{8+2*q}, s35")
    g.e(f"buffer_store_dwordx4 v[16:19], v6, s[16:19], 0 offen{SCS}")
    g.e(f"buffer_store_dwordx4 v[20:23], v6, s[16:19], 0 offen offset:16{SCS}")
    g.lab("w2_end")

def task_wt(g, idx_sreg, tag):
    g.e("s_load_dwordx4 s[8:11], s[0:1], 8")
    g.e("s_waitcnt lgkmcnt(0)")
    srd(g, 12, 8, 0, 2048*514)
    srd(g, 16, 10, 0, 2048*514)
    srd(g, 20, 4, WS_WT, 256*8192)
    g.e(f"s_and_b32 s25, s{idx_sreg}, 7")
    g.e(f"s_lshr_b32 s26, s{idx_sreg}, 3")
    g.e("s_and_b32 s27, s26, 7")
    g.e("s_lshr_b32 s26, s26, 3")
    g.e("v_and_b32 v1, 63, v0")
    g.e("s_lshl_b32 s28, s26, 6")
    g.e("v_add_u32 v1, s28, v1")
    g.e("v_lshrrev_b32 v2, 6, v0")
    g.e("s_lshr_b32 s29, s25, 1")
    g.e("s_lshl_b32 s29, s29, 9")
    g.e("s_and_b32 s32, s25, 1")
    g.e("s_lshl_b32 s32, s32, 6")
    g.e("s_add_u32 s29, s29, s32")
    g.e("s_add_u32 s29, s29, s27")
    g.e("v_lshl_add_u32 v3, v2, 3, s29")
    g.e("s_movk_i32 s33, 514")
    g.e("v_mul_lo_u32 v3, v3, s33")
    g.e("v_lshl_add_u32 v3, v1, 1, v3")
    for pp in range(2):
        for c2 in range(4):
            off = (32*pp + 128*c2)*514
            g.e(f"s_mov_b32 s34, {off}")
            g.e(f"buffer_load_ushort v{8+8*pp+c2}, v3, s[12:15], s34 offen")
            g.e(f"buffer_load_ushort v{12+8*pp+c2}, v3, s[16:19], s34 offen")
    g.e("v_lshlrev_b32 v4, 13, v1")
    g.e("s_lshl_b32 s35, s25, 10")
    g.e("s_lshl_b32 s36, s27, 7")
    g.e("s_add_u32 s35, s35, s36")
    g.e("v_add_u32 v4, s35, v4")
    g.e("v_lshl_add_u32 v4, v2, 4, v4")
    g.e("s_waitcnt vmcnt(0)")
    for pp in range(2):
        for c2 in range(4):
            g.e(f"v_lshl_or_b32 v{8+8*pp+c2}, v{12+8*pp+c2}, 16, v{8+8*pp+c2}")
    g.e(f"buffer_store_dwordx4 v[8:11], v4, s[20:23], 0 offen{SCS}")
    g.e(f"buffer_store_dwordx4 v[16:19], v4, s[20:23], 0 offen offset:64{SCS}")

def task_wab(g):
    g.e("s_cmp_lt_u32 s2, 248")
    g.e("s_cbranch_scc1 wab_end")
    g.e("s_load_dwordx4 s[8:11], s[0:1], 8")
    g.e("s_waitcnt lgkmcnt(0)")
    srd(g, 12, 8, 0, 2048*514)
    srd(g, 16, 10, 0, 2048*514)
    srd(g, 20, 4, WS_WAB, 2048*16)
    g.e("s_sub_u32 s24, s2, 248")
    g.e("s_lshr_b32 s25, s24, 1")
    g.e("s_lshl_b32 s25, s25, 9")
    g.e("s_and_b32 s26, s24, 1")
    g.e("s_lshl_b32 s26, s26, 6")
    g.e("s_add_u32 s25, s25, s26")
    g.e("v_lshrrev_b32 v1, 5, v0")
    g.e("v_bfe_u32 v2, v0, 2, 3")
    g.e("v_and_b32 v3, 3, v0")
    g.e("v_lshl_add_u32 v4, v2, 3, v1")
    g.e("v_lshl_add_u32 v4, v3, 7, v4")
    g.e("s_movk_i32 s33, 514")
    g.e("v_lshlrev_b32 v9, 4, v0")
    g.e("v_add_u32 v5, s25, v4")
    g.e("v_sub_u32 v6, 2048, v5")
    g.e("v_and_b32 v6, 2047, v6")
    g.e("v_mul_lo_u32 v7, v5, s33")
    g.e("v_mul_lo_u32 v8, v6, s33")
    g.e("buffer_load_ushort v16, v7, s[12:15], 0 offen")
    g.e("buffer_load_ushort v17, v7, s[16:19], 0 offen")
    g.e("buffer_load_ushort v18, v7, s[12:15], 0 offen offset:512")
    g.e("buffer_load_ushort v19, v7, s[16:19], 0 offen offset:512")
    g.e("buffer_load_ushort v20, v8, s[12:15], 0 offen")
    g.e("buffer_load_ushort v21, v8, s[16:19], 0 offen")
    g.e("buffer_load_ushort v22, v8, s[12:15], 0 offen offset:512")
    g.e("buffer_load_ushort v23, v8, s[16:19], 0 offen offset:512")
    g.e("s_lshl_b32 s37, s24, 12")
    g.e("s_waitcnt vmcnt(0)")
    for r in range(16, 24):
        g.e(f"v_lshlrev_b32 v{r}, 16, v{r}")
    g.e("v_add_f32 v24, v16, v20")
    g.e("v_sub_f32 v25, v17, v21")
    g.e("v_add_f32 v26, v18, v22")
    g.e("v_sub_f32 v27, v19, v23")
    g.e("v_add_f32 v28, v24, v26")
    g.e("v_add_f32 v29, v25, v27")
    g.e("v_sub_f32 v30, v24, v26")
    g.e("v_sub_f32 v31, v25, v27")
    for r in range(28, 32):
        g.e(f"v_mul_f32 v{r}, 0.25, v{r}")
    g.e(f"buffer_store_dwordx4 v[28:31], v9, s[20:23], s37 offen{SCS}")
    g.lab("wab_end")

XR1 = [240+j for j in range(8)]
def l1_prefetch(g):
    g.e("s_load_dwordx2 s[6:7], s[0:1], 0")
    g.e("v_and_b32 v1, 31, v0")
    g.e("v_lshrrev_b32 v2, 5, v0")
    g.e("s_lshl_b32 s3, s2, 13")
    g.e("v_lshl_add_u32 v3, v2, 10, s3")
    g.e("v_lshl_add_u32 v3, v1, 2, v3")
    g.e("s_waitcnt lgkmcnt(0)")
    srd(g, 8, 6, 0, 2048*1024)
    for j in range(8):
        g.e(f"buffer_load_dword v{XR1[j]}, v3, s[8:11], 0 offen offset:{128*j}")

def phase_l1(g):
    set_k(g)
    g.e("v_and_b32 v1, 31, v0")
    g.e("v_lshrrev_b32 v2, 5, v0")
    g.e("v_lshlrev_b32 v4, 3, v1")
    srd(g, 12, 4, WS_MOD, 3072*4)
    srd(g, 16, 4, WS_XD, 256*16384)
    Z = [16+2*j for j in range(8)]
    T = [32, 34, 36, 38]
    SCm = [48+2*j for j in range(8)]
    SH = [64+2*j for j in range(8)]
    TW1 = [80+2*j for j in range(7)]
    TW2 = [94+2*j for j in range(7)]
    TWS = [108+2*j for j in range(4)]
    g.e("v_cvt_f32_u32 v5, v1")
    g.e(f"v_mul_f32 v5, 0x{f2u(1/256):08x}, v5")
    gen_tw(g, TW1, 5, range(1, 8), 6)
    g.e("v_and_b32 v7, 3, v0")
    g.e("v_cvt_f32_u32 v5, v7")
    g.e(f"v_mul_f32 v5, 0x{f2u(1/32):08x}, v5")
    gen_tw(g, TW2, 5, range(1, 8), 6)
    g.e("v_lshrrev_b32 v8, 3, v0")
    g.e("v_cvt_f32_u32 v5, v8")
    g.e(f"v_mul_f32 v5, 0x{f2u(1/512):08x}, v5")
    for q in range(4):
        g.e(f"v_add_f32 v6, 0x{f2u(q/8):08x}, v5")
        g.e(f"v_cos_f32 v{TWS[q]}, v6")
        g.e(f"v_sin_f32 v{TWS[q]+1}, -v6")
    g.e("v_mul_u32_u24 v9, 2304, v2")
    g.e("v_lshl_add_u32 v10, v1, 3, v9")
    g.e("v_bfe_u32 v11, v0, 2, 3")
    g.e("v_mul_u32_u24 v12, 288, v11")
    g.e("v_add_u32 v12, v12, v9")
    g.e("v_lshl_add_u32 v12, v7, 3, v12")
    g.e(f"v_mul_u32_u24 v13, {F_RS}, v2")
    g.e("v_lshl_add_u32 v13, v11, 5, v13")
    g.e("v_lshl_add_u32 v13, v7, 3, v13")
    g.e(f"v_add_u32 v13, {LDS_F}, v13")
    g.e("s_waitcnt vmcnt(0)")
    for j in range(8):
        g.e(f"v_lshlrev_b32 v{Z[j]}, 16, v{XR1[j]}")
        g.e(f"v_and_b32 v{Z[j]+1}, 0xffff0000, v{XR1[j]}")
    wait(g, 1, "a")
    for j in range(8):
        g.e(f"buffer_load_dwordx2 {P(SH[j])}, v4, s[12:15], 0 offen offset:{256*j}{SC}")
        g.e(f"buffer_load_dwordx2 {P(SCm[j])}, v4, s[12:15], 0 offen offset:{2048+256*j}{SC}")
    g.e("s_waitcnt vmcnt(0)")
    ln_mod(g, Z, SCm, SH, 120, 121, 122, 123, 124)
    y, free = dft8(g, Z, T, -1, KS)
    for r in range(1, 8):
        cmul(g, y[r], y[r], TW1[r-1], free[0])
    for r in range(8):
        g.e(f"ds_write_b64 v10, {P(y[r])} offset:{288*r}")
    allr = y + free
    x = allr[:8]; T2 = allr[8:]
    for t1 in range(8):
        g.e(f"ds_read_b64 {P(x[t1])}, v12 offset:{32*t1}")
    g.e("s_waitcnt lgkmcnt(0)")
    y, free = dft8(g, x, T2, -1, KS)
    for p in range(1, 8):
        cmul(g, y[p], y[p], TW2[p-1], free[0])
    for p in range(8):
        g.e(f"ds_write_b64 v13, {P(y[p])} offset:{256*p}")
    g.e("s_waitcnt lgkmcnt(0)")
    g.e("s_barrier")
    g.e("v_and_b32 v14, 7, v0")
    g.e(f"v_mul_u32_u24 v15, {F_RS}, v14")
    g.e(f"v_add_u32 v15, {LDS_F}, v15")
    g.e("v_sub_u32 v9, 64, v8")
    g.e("v_cmp_eq_u32 vcc, 0, v8")
    g.e("v_mov_b32 v10, 32")
    g.e("s_nop 1")
    g.e("v_cndmask_b32 v9, v9, v10, vcc")
    g.e("v_lshl_add_u32 v10, v8, 5, v15")
    g.e("v_lshl_add_u32 v11, v9, 5, v15")
    A = [16, 18, 20, 22]; B = [24, 26, 28, 30]
    g.e("ds_read_b128 v[16:19], v10")
    g.e("ds_read_b128 v[20:23], v10 offset:16")
    g.e("ds_read_b128 v[24:27], v11")
    g.e("ds_read_b128 v[28:31], v11 offset:16")
    g.e("s_lshl_b32 s3, s2, 6")
    g.e("v_lshl_add_u32 v12, v14, 3, s3")
    g.e("v_lshl_add_u32 v13, v8, 14, v12")
    g.e("v_lshl_add_u32 v14, v9, 14, v12")
    for q in range(4):
        g.e(f"s_mov_b32 s{40+q}, 0x{q*64*16384:x}")
    g.e("s_waitcnt lgkmcnt(0)")
    ZA, fr = dft4(g, A, [32, 34], -1)
    ZB, fr2 = dft4(g, B, [36, 38], -1)
    E, D, Tt = 40, 42, 44
    g.e("s_mov_b64 s[50:51], exec")
    g.e("s_andn2_b64 exec, exec, vcc")
    for q in range(4):
        oa, ob = 46+4*q, 48+4*q
        split_pair(g, ZA[q], ZB[3-q], P(TWS[q]), E, D, Tt, oa, ob)
        g.e(f"buffer_store_dwordx2 {P(oa)}, v13, s[16:19], s{40+q} offen{SCS}")
        g.e(f"buffer_store_dwordx2 {P(ob)}, v14, s[16:19], s{40+3-q} offen{SCS}")
    g.e("s_and_b64 exec, s[50:51], vcc")
    g.e("s_cbranch_execz l1_nospecial")
    pairs = [(ZA[0], ZA[0], 0, 256), (ZA[1], ZA[3], 64, 192), (ZA[2], ZA[2], 128, None),
             (ZB[0], ZB[3], 32, 224), (ZB[1], ZB[2], 96, 160)]
    for n, (a, b, k, k2) in enumerate(pairs):
        oa, ob = 64+4*n, 66+4*n
        const_tw(g, 52, k, 512)
        split_pair(g, a, b, "s[52:53]", E, D, Tt, oa, ob)
        if k == 0:
            g.e(f"v_mov_b32 v{oa+1}, v{ob}")
            g.e(f"buffer_store_dwordx2 {P(oa)}, v12, s[16:19], 0 offen{SCS}")
            continue
        g.e(f"s_mov_b32 s54, 0x{k*16384:x}")
        g.e(f"buffer_store_dwordx2 {P(oa)}, v12, s[16:19], s54 offen{SCS}")
        if k2 is not None:
            g.e(f"s_mov_b32 s54, 0x{k2*16384:x}")
            g.e(f"buffer_store_dwordx2 {P(ob)}, v12, s[16:19], s54 offen{SCS}")
    g.lab("l1_nospecial")
    g.e("s_mov_b64 exec, s[50:51]")

def phase_l2(g):
    set_k(g)
    g.e("s_lshl_b32 s3, s2, 14")
    g.e("v_lshl_add_u32 v1, v0, 3, s3")
    g.e("s_lshl_b32 s3, s2, 13")
    g.e("v_lshl_add_u32 v2, v0, 2, s3")
    srd(g, 8, 4, WS_XD, 256*16384)
    srd(g, 12, 4, WS_WT, 256*8192)
    srd(g, 20, 4, WS_ZS, 256*16384)
    srd(g, 24, 4, WS_WAB, 2048*16)
    Z = [16+2*j for j in range(8)]
    T = [32, 34, 36, 38]
    WR = [40+j for j in range(8)]
    TW1 = [48+2*j for j in range(7)]
    TW2 = [62+2*j for j in range(7)]
    TW3 = [76+2*j for j in range(7)]
    g.e("s_movk_i32 s17, 4096")
    g.e("v_cvt_f32_u32 v5, v0")
    g.e(f"v_mul_f32 v5, 0x{f2u(1/2048):08x}, v5")
    gen_tw(g, TW1, 5, range(1, 8), 6)
    g.e("v_and_b32 v7, 31, v0")
    g.e("v_cvt_f32_u32 v5, v7")
    g.e(f"v_mul_f32 v5, 0x{f2u(1/256):08x}, v5")
    gen_tw(g, TW2, 5, range(1, 8), 6)
    g.e("v_and_b32 v8, 3, v0")
    g.e("v_cvt_f32_u32 v5, v8")
    g.e(f"v_mul_f32 v5, 0x{f2u(1/32):08x}, v5")
    gen_tw(g, TW3, 5, range(1, 8), 6)
    g.e("v_lshlrev_b32 v9, 3, v0")
    g.e("v_lshrrev_b32 v10, 5, v0")
    g.e("v_lshlrev_b32 v11, 11, v10")
    g.e("v_lshl_add_u32 v11, v7, 3, v11")
    g.e("v_mul_u32_u24 v12, 2304, v10")
    g.e("v_add_u32 v12, 16384, v12")
    g.e("v_lshl_add_u32 v13, v7, 3, v12")
    g.e("v_bfe_u32 v14, v0, 2, 3")
    g.e("v_mul_u32_u24 v14, 288, v14")
    g.e("v_add_u32 v14, v14, v12")
    g.e("v_lshl_add_u32 v15, v8, 6, v14")
    g.e("v_lshl_add_u32 v14, v8, 3, v14")
    wait(g, 2, "b")
    rank_resolve(g)
    for j in range(8):
        if j < 2:
            g.e(f"buffer_load_dwordx2 {P(Z[j])}, v1, s[8:11], 0 offen offset:{2048*j}{SC}")
        else:
            g.e(f"s_movk_i32 s19, {2048*j}")
            g.e(f"buffer_load_dwordx2 {P(Z[j])}, v1, s[8:11], s19 offen{SC}")
    for i in range(8):
        if i < 4:
            g.e(f"buffer_load_dword v{WR[i]}, v2, s[12:15], 0 offen offset:{1024*i}{SC}")
        else:
            g.e(f"buffer_load_dword v{WR[i]}, v2, s[12:15], s17 offen offset:{1024*(i-4)}{SC}")
    g.e("s_cmp_lg_u32 s2, 0")
    g.e("s_cbranch_scc1 l2_nowab")
    g.e("v_lshlrev_b32 v3, 4, v0")
    for i in range(8):
        g.e(f"s_movk_i32 s19, {4096*i}")
        g.e(f"buffer_load_dwordx4 v[{128+4*i}:{131+4*i}], v3, s[24:27], s19 offen{SC}")
    g.e("s_waitcnt vmcnt(16)")
    g.e("s_branch l2_go")
    g.lab("l2_nowab")
    g.e("s_waitcnt vmcnt(8)")
    g.lab("l2_go")
    y, free = dft8(g, Z, T, -1, KS)
    for r in range(1, 8):
        cmul(g, y[r], y[r], TW1[r-1], free[0])
    for r in range(8):
        g.e(f"ds_write_b64 v9, {P(y[r])} offset:{2048*r}")
    g.e("s_waitcnt lgkmcnt(0)")
    g.e("s_barrier")
    allr = y + free; x = allr[:8]; T2 = allr[8:]
    for t1 in range(8):
        g.e(f"ds_read_b64 {P(x[t1])}, v11 offset:{256*t1}")
    g.e("s_waitcnt lgkmcnt(0)")
    y, free = dft8(g, x, T2, -1, KS)
    for p in range(1, 8):
        cmul(g, y[p], y[p], TW2[p-1], free[0])
    for p in range(8):
        g.e(f"ds_write_b64 v13, {P(y[p])} offset:{288*p}")
    allr = y + free; x = allr[:8]; T2 = allr[8:]
    for b in range(8):
        g.e(f"ds_read_b64 {P(x[b])}, v14 offset:{32*b}")
    g.e("s_waitcnt lgkmcnt(0)")
    y, free = dft8(g, x, T2, -1, KS)
    for c in range(1, 8):
        cmul(g, y[c], y[c], TW3[c-1], free[0])
    for c in range(8):
        g.e(f"ds_write_b64 v14, {P(y[c])} offset:{32*c}")
    g.e("s_waitcnt lgkmcnt(0)")
    for i in range(4):
        g.e(f"ds_read_b128 v[{16+4*i}:{19+4*i}], v15 offset:{16*i}")
    g.e("s_waitcnt lgkmcnt(0)")
    Y0, f0 = dft4(g, [16, 18, 20, 22], [32, 34], -1)
    Y1, f1 = dft4(g, [24, 26, 28, 30], [36, 38], -1)
    g.e("s_waitcnt vmcnt(0)")
    tw = 90; tt = 92
    g.e("s_cmp_eq_u32 s2, 0")
    g.e("s_cbranch_scc1 l2_col0")
    for q in range(4):
        for e, Y in ((0, Y0), (1, Y1)):
            wr = WR[q*2+e]
            g.e(f"v_lshlrev_b32 v{tw}, 16, v{wr}")
            g.e(f"v_and_b32 v{tw+1}, 0xffff0000, v{wr}")
            cmul(g, Y[q], Y[q], tw, tt)
    g.e("s_branch l2_inv")
    g.lab("l2_col0")
    g.e("v_lshrrev_b32 v3, 5, v0")
    g.e("v_bfe_u32 v4, v0, 2, 3")
    g.e("v_lshl_add_u32 v3, v4, 3, v3")
    g.e("v_lshl_add_u32 v3, v8, 7, v3")
    g.e(f"v_lshlrev_b32 v4, 3, v3")
    g.e(f"v_add_u32 v4, {LDS_MIR}, v4")
    for q in range(4):
        for e, Y in ((0, Y0), (1, Y1)):
            g.e(f"ds_write_b64 v4, {P(Y[q])} offset:{(512*q+64*e)*8}")
    g.e("s_waitcnt lgkmcnt(0)")
    g.e("s_barrier")
    for q in range(4):
        for e, Y in ((0, Y0), (1, Y1)):
            i = q*2+e
            g.e(f"v_add_u32 v5, {512*q+64*e}, v3")
            g.e("v_sub_u32 v5, 2048, v5")
            g.e("v_and_b32 v5, 2047, v5")
            g.e("v_lshlrev_b32 v5, 3, v5")
            g.e(f"v_add_u32 v5, {LDS_MIR}, v5")
            g.e(f"ds_read_b64 {P(96+2*i)}, v5")
    g.e("s_waitcnt lgkmcnt(0)")
    for q in range(4):
        for e, Y in ((0, Y0), (1, Y1)):
            i = q*2+e
            wa, wb = 128+4*i, 130+4*i
            m = 96+2*i
            cmul(g, Y[q], Y[q], wa, tt)
            g.e(f"v_pk_mul_f32 {P(tt)}, {P(m)}, {P(wb)} op_sel:[0,0] op_sel_hi:[1,0] neg_hi:[1,0]")
            g.e(f"v_pk_fma_f32 {P(tt)}, {P(m)}, {P(wb)}, {P(tt)} op_sel:[1,1,0] op_sel_hi:[0,1,1]")
            cadd(g, Y[q], Y[q], tt)
    g.lab("l2_inv")
    A0, f0 = dft4(g, Y0, f0, +1)
    A1, f1 = dft4(g, Y1, f1, +1)
    for a in range(4):
        g.e(f"ds_write_b64 v15, {P(A0[a])} offset:{8*a}")
        g.e(f"ds_write_b64 v15, {P(A1[a])} offset:{32+8*a}")
    x = Z; T2 = T
    for c in range(8):
        g.e(f"ds_read_b64 {P(x[c])}, v14 offset:{32*c}")
    g.e("s_waitcnt lgkmcnt(0)")
    for c in range(1, 8):
        cmul(g, x[c], x[c], TW3[c-1], T2[0], conj=True)
    y, free = dft8(g, x, T2, +1, KS)
    for b in range(8):
        g.e(f"ds_write_b64 v14, {P(y[b])} offset:{32*b}")
    allr = y + free; x = allr[:8]; T2 = allr[8:]
    for p in range(8):
        g.e(f"ds_read_b64 {P(x[p])}, v13 offset:{288*p}")
    g.e("s_waitcnt lgkmcnt(0)")
    for p in range(1, 8):
        cmul(g, x[p], x[p], TW2[p-1], T2[0], conj=True)
    y, free = dft8(g, x, T2, +1, KS)
    for t1 in range(8):
        g.e(f"ds_write_b64 v11, {P(y[t1])} offset:{256*t1}")
    g.e("s_waitcnt lgkmcnt(0)")
    g.e("s_barrier")
    allr = y + free; x = allr[:8]; T2 = allr[8:]
    for r in range(8):
        g.e(f"ds_read_b64 {P(x[r])}, v9 offset:{2048*r}")
    g.e("s_waitcnt lgkmcnt(0)")
    for r in range(1, 8):
        cmul(g, x[r], x[r], TW1[r-1], T2[0], conj=True)
    y, free = dft8(g, x, T2, +1, KS)
    for j in range(8):
        if j < 2:
            g.e(f"buffer_store_dwordx2 {P(y[j])}, v1, s[20:23], 0 offen offset:{2048*j}{SCS}")
        else:
            g.e(f"s_movk_i32 s19, {2048*j}")
            g.e(f"buffer_store_dwordx2 {P(y[j])}, v1, s[20:23], s19 offen{SCS}")

def phase_l3(g):
    lid_read(g)
    set_k(g)
    g.e("s_load_dwordx2 s[6:7], s[0:1], 0")
    g.e("v_and_b32 v1, 31, v0")
    g.e("v_lshrrev_b32 v2, 5, v0")
    g.e("v_lshrrev_b32 v8, 3, v0")
    g.e("v_and_b32 v14, 7, v0")
    g.e("v_sub_u32 v9, 64, v8")
    g.e("v_cmp_eq_u32 vcc, 0, v8")
    g.e("v_mov_b32 v10, 32")
    g.e("s_nop 1")
    g.e("v_cndmask_b32 v9, v9, v10, vcc")
    g.e("s_mov_b64 s[56:57], vcc")
    g.e("s_lshl_b32 s3, s71, 6")
    g.e("v_lshl_add_u32 v12, v14, 3, s3")
    g.e("v_lshl_add_u32 v13, v8, 14, v12")
    g.e("v_lshl_add_u32 v11, v9, 14, v12")
    for q in range(4):
        g.e(f"s_mov_b32 s{40+q}, 0x{q*64*16384:x}")
    g.e("s_waitcnt lgkmcnt(0)")
    srd(g, 8, 6, 0, 2048*1024)
    srd(g, 12, 4, WS_MOD, 3072*4)
    srd(g, 16, 4, WS_ZS, 256*16384)
    srd(g, 20, 4, WS_X1, 2048*1024)
    srd(g, 24, 4, WS_H2, 2048*1024)
    XA = [16, 18, 20, 22]; XB = [24, 26, 28, 30]; XN = 32
    g.e("s_lshl_b32 s3, s71, 13")
    g.e("v_lshl_add_u32 v3, v2, 10, s3")
    g.e("v_lshl_add_u32 v3, v1, 2, v3")
    g.e("v_lshlrev_b32 v4, 3, v1")
    XR = [40+j for j in range(8)]
    SCm = [48+2*j for j in range(8)]
    SH = [64+2*j for j in range(8)]
    GA = [128+2*j for j in range(8)]
    TW1 = [80+2*j for j in range(7)]
    TW2 = [94+2*j for j in range(7)]
    TWS = [108+2*j for j in range(4)]
    for j in range(8):
        g.e(f"buffer_load_dword v{XR[j]}, v3, s[8:11], 0 offen offset:{128*j}")
    g.e("s_movk_i32 s45, 4096")
    g.e("s_movk_i32 s46, 8192")
    for j in range(8):
        g.e(f"buffer_load_dwordx2 {P(GA[j])}, v4, s[12:15], s45 offen offset:{256*j}{SC}")
        g.e(f"buffer_load_dwordx2 {P(SH[j])}, v4, s[12:15], s45 offen offset:{2048+256*j}{SC}")
        g.e(f"buffer_load_dwordx2 {P(SCm[j])}, v4, s[12:15], s46 offen offset:{256*j}{SC}")
    g.e("v_cvt_f32_u32 v5, v1")
    g.e(f"v_mul_f32 v5, 0x{f2u(1/256):08x}, v5")
    gen_tw(g, TW1, 5, range(1, 8), 6)
    g.e("v_and_b32 v7, 3, v0")
    g.e("v_cvt_f32_u32 v5, v7")
    g.e(f"v_mul_f32 v5, 0x{f2u(1/32):08x}, v5")
    gen_tw(g, TW2, 5, range(1, 8), 6)
    g.e("v_cvt_f32_u32 v5, v8")
    g.e(f"v_mul_f32 v5, 0x{f2u(1/512):08x}, v5")
    for q in range(4):
        g.e(f"v_add_f32 v6, 0x{f2u(q/8):08x}, v5")
        g.e(f"v_cos_f32 v{TWS[q]}, v6")
        g.e(f"v_sin_f32 v{TWS[q]+1}, -v6")
    g.e(f"v_mul_u32_u24 v15, {F_RS}, v14")
    g.e(f"v_add_u32 v15, {LDS_F}, v15")
    g.e("v_lshl_add_u32 v10, v8, 5, v15")
    g.e("v_lshl_add_u32 v15, v9, 5, v15")
    E, D, Tt = 34, 36, 38
    ZA = [144, 146, 148, 150]; ZB = [152, 154, 156, 158]
    g.e("s_waitcnt vmcnt(0)")
    wait(g, 3, "c")
    for q in range(4):
        g.e(f"buffer_load_dwordx2 {P(XA[q])}, v13, s[16:19], s{40+q} offen{SC}")
        g.e(f"buffer_load_dwordx2 {P(XB[q])}, v11, s[16:19], s{40+q} offen{SC}")
    g.e("s_waitcnt vmcnt(0)")
    g.e("s_mov_b64 vcc, s[56:57]")
    g.e("s_mov_b64 s[50:51], exec")
    g.e("s_andn2_b64 exec, exec, vcc")
    for q in range(4):
        merge_pair(g, XA[q], XB[3-q], P(TWS[q]), E, D, Tt, ZA[q], ZB[3-q])
    g.e("s_and_b64 exec, s[50:51], vcc")
    g.e("s_cbranch_execz l3_nospecial")
    g.e(f"v_mov_b32 v{XN}, v{XA[0]+1}")
    g.e(f"v_mov_b32 v{XA[0]+1}, 0")
    g.e(f"v_mov_b32 v{XN+1}, 0")
    pairs = [(XA[0], XN, 0, ZA[0], 160), (XA[1], XA[3], 64, ZA[1], ZA[3]), (XA[2], XA[2], 128, ZA[2], 160),
             (XB[0], XB[3], 32, ZB[0], ZB[3]), (XB[1], XB[2], 96, ZB[1], ZB[2])]
    for (a, b, k, oa, ob) in pairs:
        const_tw(g, 52, k, 512)
        merge_pair(g, a, b, "s[52:53]", E, D, Tt, oa, ob)
    g.lab("l3_nospecial")
    g.e("s_mov_b64 exec, s[50:51]")
    YA, f0 = dft4(g, ZA, [16, 18], +1)
    YB, f1 = dft4(g, ZB, [20, 22], +1)
    for t0 in range(4):
        g.e(f"ds_write_b64 v10, {P(YA[t0])} offset:{8*t0}")
        g.e(f"ds_write_b64 v15, {P(YB[t0])} offset:{8*t0}")
    g.e("s_waitcnt lgkmcnt(0)")
    g.e("s_barrier")
    g.e("v_bfe_u32 v11, v0, 2, 3")
    g.e(f"v_mul_u32_u24 v13, {F_RS}, v2")
    g.e("v_lshl_add_u32 v13, v11, 5, v13")
    g.e("v_lshl_add_u32 v13, v7, 3, v13")
    g.e(f"v_add_u32 v13, {LDS_F}, v13")
    Z = [16+2*j for j in range(8)]; T = [32, 34, 36, 38]
    for p in range(8):
        g.e(f"ds_read_b64 {P(Z[p])}, v13 offset:{256*p}")
    g.e("v_mul_u32_u24 v9, 2304, v2")
    g.e("v_lshl_add_u32 v10, v1, 3, v9")
    g.e("v_mul_u32_u24 v12, 288, v11")
    g.e("v_add_u32 v12, v12, v9")
    g.e("v_lshl_add_u32 v12, v7, 3, v12")
    g.e("s_waitcnt lgkmcnt(0)")
    for p in range(1, 8):
        cmul(g, Z[p], Z[p], TW2[p-1], T[0], conj=True)
    y, free = dft8(g, Z, T, +1, KS)
    for t1 in range(8):
        g.e(f"ds_write_b64 v12, {P(y[t1])} offset:{32*t1}")
    allr = y + free; x = allr[:8]; T2 = allr[8:]
    for r in range(8):
        g.e(f"ds_read_b64 {P(x[r])}, v10 offset:{288*r}")
    g.e("s_waitcnt lgkmcnt(0)")
    for r in range(1, 8):
        cmul(g, x[r], x[r], TW1[r-1], T2[0], conj=True)
    y, free = dft8(g, x, T2, +1, KS)
    g.e(f"s_mov_b32 s62, 0x{f2u(2.0**-21):08x}")
    g.e(f"s_mov_b32 s63, 0x{f2u(2.0**-21):08x}")
    tp = 124
    g.e("v_mul_u32_u24 v13, 2304, v2")
    g.e("v_lshl_add_u32 v13, v1, 2, v13")
    for j in range(8):
        r = y[j]
        g.e(f"v_pk_mul_f32 {P(r)}, {P(r)}, s[62:63]")
        round_pair(g, r, tp)
        g.e(f"v_pk_mul_f32 {P(r)}, {P(r)}, {P(GA[j])}")
        round_pair(g, r, tp)
        g.e(f"v_lshlrev_b32 v{tp+2}, 16, v{XR[j]}")
        g.e(f"v_and_b32 v{tp+3}, 0xffff0000, v{XR[j]}")
        g.e(f"v_pk_add_f32 {P(r)}, {P(r)}, {P(tp+2)}")
        round_pair(g, r, tp)
        g.e(f"ds_write_b32 v13, v{tp} offset:{128*j}")
    ln_mod(g, y, SCm, SH, 120, 121, 122, 123, 124)
    for j in range(8):
        g.e(f"v_cvt_pk_bf16_f32 v{XR[j]}, v{y[j]}, v{y[j]+1}")
        g.e(f"ds_write_b32 v13, v{XR[j]} offset:{1040+128*j}")
    g.e("s_waitcnt lgkmcnt(0)")
    g.e("s_barrier")
    g.e("v_and_b32 v14, 7, v0")
    g.e("v_lshrrev_b32 v8, 3, v0")
    g.e("v_mul_u32_u24 v13, 2304, v14")
    g.e("v_lshl_add_u32 v13, v8, 4, v13")
    g.e("ds_read_b128 v[16:19], v13")
    g.e("ds_read_b128 v[20:23], v13 offset:512")
    g.e("ds_read_b128 v[24:27], v13 offset:1040")
    g.e("ds_read_b128 v[28:31], v13 offset:1552")
    g.e("s_lshl_b32 s3, s71, 13")
    g.e("v_lshl_add_u32 v10, v14, 10, s3")
    g.e("v_lshl_add_u32 v10, v8, 4, v10")
    g.e("s_lshr_b32 s3, s71, 1")
    g.e("s_lshl_b32 s3, s3, 14")
    g.e("s_and_b32 s47, s71, 1")
    g.e("s_lshl_b32 s47, s47, 7")
    g.e("s_add_u32 s3, s3, s47")
    g.e("v_lshl_add_u32 v11, v8, 8, s3")
    g.e("v_lshl_add_u32 v11, v14, 4, v11")
    g.e("s_movk_i32 s47, 8192")
    g.e("s_waitcnt lgkmcnt(0)")
    st_dual(g, "buffer_store_dwordx4 v[16:19], v10, s[20:23], 0 offen")
    st_dual(g, "buffer_store_dwordx4 v[20:23], v10, s[20:23], 0 offen offset:512")
    st_dual(g, "buffer_store_dwordx4 v[24:27], v11, s[24:27], 0 offen")
    st_dual(g, "buffer_store_dwordx4 v[28:31], v11, s[24:27], s47 offen")

WOFF = 36864
def g1_prefetch(g):
    g.e("s_bfe_u32 s20, s71, 0x40001")
    g.e("v_and_b32 v2, 63, v0")
    srd(g, 12, 4, WS_W1P, 16*16*7*1024)
    g.e("v_lshlrev_b32 v7, 4, v2")
    g.e("s_mul_i32 s25, s20, 114688")
    g.e("s_sub_u32 s26, s95, 4")
    g.e("s_lshl_b32 s26, s26, 10")
    g.e("s_add_u32 s25, s25, s26")
    g.e(f"s_add_u32 s27, s26, {WOFF}")
    for i in range(28):
        g.e("s_mov_b32 m0, s27")
        g.e("s_add_u32 s27, s27, 4096")
        g.e(f"buffer_load_dwordx4 v7, s[12:15], s25 offen lds")
        g.e("s_add_u32 s25, s25, 4096")

def phase_g1(g):
    g.e("s_lshr_b32 s21, s71, 5")
    g.e("s_lshl_b32 s21, s21, 1")
    g.e("s_and_b32 s20, s71, 1")
    g.e("s_add_u32 s21, s21, s20")
    g.e("s_bfe_u32 s20, s71, 0x40001")
    g.e("s_and_b32 s22, s95, 3")
    g.e("s_lshr_b32 s34, s95, 2")
    g.e("v_and_b32 v2, 63, v0")
    g.e("v_and_b32 v3, 15, v0")
    g.e("v_bfe_u32 v4, v0, 4, 2")
    srd(g, 8, 4, WS_H2, 2048*1024)
    srd(g, 16, 4, WS_HID, 128*56*1024)
    g.e("s_lshl_b32 s23, s21, 3")
    g.e("s_lshl_b32 s24, s22, 1")
    g.e("s_add_u32 s23, s23, s24")
    g.e("s_lshl_b32 s23, s23, 14")
    g.e("v_lshl_add_u32 v5, v2, 4, s23")
    g.e("v_add_u32 v6, 16384, v5")
    g.e("v_lshlrev_b32 v7, 4, v2")
    g.e("s_lshl_b32 s35, s34, 12")
    g.e(f"s_add_u32 s35, s35, {WOFF}")
    g.e("v_add_u32 v7, s35, v7")
    g.e("v_add_u32 v8, 57344, v7")
    HB = [[64 + (mf*16+ks)*4 for ks in range(16)] for mf in range(2)]
    ACC = [[224 + (mf*4+nf)*4 for nf in range(4)] for mf in range(2)]
    ACC = [[192 + (mf*4+nf)*4 for nf in range(4)] for mf in range(2)]
    for i in range(32):
        g.e(f"v_mov_b32 v{192+i}, 0")
    g.e("v_lshrrev_b32 v9, 1, v4")
    g.e("v_lshlrev_b32 v9, 8, v9")
    g.e("v_lshl_add_u32 v9, v3, 4, v9")
    g.e("v_and_b32 v10, 1, v4")
    g.e("v_mul_u32_u24 v10, 57344, v10")
    g.e("v_add_u32 v9, v9, v10")
    g.e("s_lshl_b32 s28, s21, 3")
    g.e("s_lshl_b32 s29, s22, 1")
    g.e("s_add_u32 s28, s28, s29")
    g.e("s_mul_i32 s28, s28, 57344")
    g.e("s_mul_i32 s30, s20, 7")
    g.e("s_lshl_b32 s29, s34, 2")
    g.e("s_add_u32 s30, s30, s29")
    g.e(f"s_mov_b32 s40, 0x{f2u(-math.log2(math.e)):08x}")
    g.e(f"s_mov_b32 s41, 0x{f2u(-math.log2(math.e)):08x}")
    g.e("s_movk_i32 s45, 4096")
    g.e("s_movk_i32 s46, 8192")
    g.e("s_movk_i32 s47, 12288")
    g.e("s_mov_b32 s42, 1.0")
    g.e("s_mov_b32 s43, 1.0")
    g.e("s_waitcnt vmcnt(0)")
    wait(g, 4, "d")
    for ks in range(16):
        so = "0" if ks < 4 else f"s{44+ks//4}"
        g.e(f"buffer_load_dwordx4 v[{HB[0][ks]}:{HB[0][ks]+3}], v5, s[8:11], {so} offen offset:{1024*(ks%4)}")
        g.e(f"buffer_load_dwordx4 v[{HB[1][ks]}:{HB[1][ks]+3}], v6, s[8:11], {so} offen offset:{1024*(ks%4)}")
    if PROFILE:
        g.e("s_waitcnt vmcnt(0)")
        g.e("s_memrealtime s[88:89]")
        g.e("s_waitcnt lgkmcnt(0)")
        g.e("v_writelane_b32 v248, s88, 19")
    def epi(nf):
        L = []
        for mf in range(2):
            a = ACC[mf][nf]
            o = 16 + 8*mf
            for h in (0, 2):
                L.append(f"v_cvt_pk_bf16_f32 v{o+4}, v{a+h}, v{a+h+1}")
                L.append(f"v_lshlrev_b32 v{o+h}, 16, v{o+4}")
                L.append(f"v_and_b32 v{o+h+1}, 0xffff0000, v{o+4}")
            L.append(f"v_pk_mul_f32 {P(o+4)}, {P(o)}, s[40:41]")
            L.append(f"v_pk_mul_f32 {P(o+6)}, {P(o+2)}, s[40:41]")
            for i in range(4):
                L.append(f"v_exp_f32 v{o+4+i}, v{o+4+i}")
            L.append(f"v_pk_add_f32 {P(o+4)}, {P(o+4)}, s[42:43]")
            L.append(f"v_pk_add_f32 {P(o+6)}, {P(o+6)}, s[42:43]")
            for i in range(4):
                L.append(f"v_rcp_f32 v{o+4+i}, v{o+4+i}")
            L.append(f"v_pk_mul_f32 {P(o)}, {P(o)}, {P(o+4)}")
            L.append(f"v_pk_mul_f32 {P(o+2)}, {P(o+2)}, {P(o+6)}")
            L.append(f"v_cvt_pk_bf16_f32 v{12+2*mf}, v{o}, v{o+1}")
            L.append(f"v_cvt_pk_bf16_f32 v{13+2*mf}, v{o+2}, v{o+3}")
        L.append(f"s_add_u32 s31, s30, {nf}")
        L.append("s_lshr_b32 s32, s31, 1")
        L.append("s_lshl_b32 s32, s32, 10")
        L.append("s_and_b32 s33, s31, 1")
        L.append("s_lshl_b32 s33, s33, 9")
        L.append("s_add_u32 s32, s32, s33")
        L.append("s_add_u32 s32, s32, s28")
        L.append("v_permlane16_swap_b32 v12, v14")
        L.append("v_permlane16_swap_b32 v13, v15")
        L.append("s_nop 0")
        L.append(("dual", "buffer_store_dwordx4 v[12:15], v9, s[16:19], s32 offen"))
        L.append("s_nop 1")
        return L
    def emit(l):
        if isinstance(l, tuple):
            st_dual(g, l[1])
        else:
            g.e(l)
    def body(NNF, tag, first):
        steps = [(nf, ks) for nf in range(NNF) for ks in range(16)]
        NS = len(steps); AH = 6
        def wr(si):
            return 224 + (si % 6)*4 if False else 40 + (si % 6)*4
        def rd(si):
            nf, ks = steps[si]
            base = "v7" if ks < 8 else "v8"
            off = (ks*7+nf)*1024 - (0 if ks < 8 else 57344)
            g.e(f"ds_read_b128 v[{wr(si)}:{wr(si)+3}], {base} offset:{off}")
        AH = 5
        for si in range(AH):
            rd(si)
        pend = []
        for si, (nf, ks) in enumerate(steps):
            if si + AH < NS:
                rd(si+AH)
            lg = min(AH, NS-1-si)
            if nf == 0:
                g.e(f"s_waitcnt vmcnt({2*(15-ks)}) lgkmcnt({lg})")
            else:
                g.e(f"s_waitcnt lgkmcnt({lg})")
            for mf in range(2):
                a = ACC[mf][nf]
                g.e(f"v_mfma_f32_16x16x32_bf16 v[{a}:{a+3}], v[{wr(si)}:{wr(si)+3}], v[{HB[mf][ks]}:{HB[mf][ks]+3}], v[{a}:{a+3}]")
            if ks == 15 and PROFILE:
                g.e("s_memrealtime s[88:89]")
                g.e("s_waitcnt lgkmcnt(0)")
                g.e(f"v_writelane_b32 v248, s88, {20+nf}")
            if ks == 4 and nf > 0:
                pend = epi(nf-1)
            for _ in range(5):
                if pend:
                    emit(pend.pop(0))
        while pend:
            emit(pend.pop(0))
        g.e("s_nop 15")
        for l in epi(NNF-1):
            emit(l)
    g.e("s_cmp_lg_u32 s34, 0")
    g.e("s_cbranch_scc1 g1_cg1")
    body(4, "a", True)
    g.e("s_branch g1_end")
    g.lab("g1_cg1")
    body(3, "b", False)
    g.lab("g1_end")

def wreg(ks, nf):
    return 80 + (ks*4+nf)*4

def g2_prefetch(g):
    g.e("s_load_dwordx2 s[6:7], s[0:1], 64")
    g.e("s_bfe_u32 s20, s71, 0x30002")
    g.e("s_lshr_b32 s21, s71, 5")
    g.e("s_lshl_b32 s21, s21, 2")
    g.e("s_and_b32 s22, s71, 3")
    g.e("s_add_u32 s21, s21, s22")
    g.e("v_and_b32 v2, 63, v0")
    g.e("v_and_b32 v3, 15, v0")
    g.e("v_bfe_u32 v4, v0, 4, 2")
    g.e("s_waitcnt lgkmcnt(0)")
    srd(g, 8, 4, WS_HID, 128*56*1024)
    srd(g, 12, 4, WS_W2P, 8*56*4*1024)
    srd(g, 16, 6, 0, 2048*1024)
    srd(g, 80, 4, WS_X1, 2048*1024)
    srd(g, 84, 4, WS_MOD, 3072*4)
    g.e("v_lshlrev_b32 v7, 4, v2")
    g.e("s_mul_i32 s23, s95, 7")
    g.e("s_mul_i32 s24, s20, 56")
    g.e("s_add_u32 s24, s24, s23")
    g.e("s_lshl_b32 s24, s24, 12")
    for mf in range(4):
        g.e(f"s_lshl_b32 s{32+mf}, s21, 2")
        g.e(f"s_add_u32 s{32+mf}, s{32+mf}, {mf}")
        g.e(f"s_mul_i32 s{32+mf}, s{32+mf}, 56")
        g.e(f"s_add_u32 s{32+mf}, s{32+mf}, s23")
        g.e(f"s_lshl_b32 s{32+mf}, s{32+mf}, 10")
    for ks in range(7):
        for nf in range(4):
            w = wreg(ks, nf)
            g.e(f"buffer_load_dwordx4 v[{w}:{w+3}], v7, s[12:15], s24 offen offset:{1024*nf}")
        g.e("s_add_u32 s24, s24, 4096")

def phase_g2(g):
    HD = 3
    def hreg(ks, mf):
        return 192 + ((ks % HD)*4+mf)*4
    for i in range(64):
        g.e(f"v_mov_b32 v{16+i}, 0")
    g.e("s_waitcnt vmcnt(0)")
    wait(g, 5, "e")
    def issue_h(ks):
        for mf in range(4):
            h = hreg(ks, mf)
            g.e(f"buffer_load_dwordx4 v[{h}:{h+3}], v7, s[8:11], s{32+mf} offen")
            g.e(f"s_add_u32 s{32+mf}, s{32+mf}, 1024")
    for ks in range(HD):
        issue_h(ks)
    for ks in range(7):
        after = min(7, ks+HD) - (ks+1)
        g.e(f"s_waitcnt vmcnt({4*after})")
        for mf in range(4):
            for nf in range(4):
                a = 16 + (mf*4+nf)*4
                w = wreg(ks, nf); h = hreg(ks, mf)
                g.e(f"v_mfma_f32_16x16x32_bf16 v[{a}:{a+3}], v[{w}:{w+3}], v[{h}:{h+3}], v[{a}:{a+3}]")
        if ks + HD < 7:
            issue_h(ks+HD)
    g.e("s_lshr_b32 s25, s95, 1")
    g.e("s_and_b32 s26, s95, 1")
    g.e("s_lshl_b32 s27, s20, 7")
    g.e("v_lshl_add_u32 v11, v4, 3, s27")
    g.e("s_lshl_b32 s31, s26, 6")
    g.e("v_add_u32 v11, s31, v11")
    g.e("v_lshlrev_b32 v12, 1, v11")
    g.e("s_movk_i32 s28, 10240")
    g.e("s_lshl_b32 s30, s21, 6")
    g.e("s_lshl_b32 s31, s25, 4")
    g.e("s_add_u32 s30, s30, s31")
    g.e("v_add_u32 v10, s30, v3")
    g.e("v_lshlrev_b32 v10, 10, v10")
    g.e("v_add_u32 v10, v10, v11")
    for nf in range(2):
        g.e(f"buffer_load_dwordx4 v[{80+4*nf}:{83+4*nf}], v12, s[84:87], s28 offen offset:{64*nf}")
        g.e(f"buffer_load_dwordx2 v[{88+2*nf}:{89+2*nf}], v10, s[80:83], 0 offen offset:{32*nf}")
    g.e("s_nop 7")
    g.e("s_lshl_b32 s29, s95, 14")
    g.e("v_add_u32 v8, s29, v7")
    for f in range(16):
        g.e(f"ds_write_b128 v8, v[{16+4*f}:{19+4*f}] offset:{1024*f}")
    g.e("s_waitcnt lgkmcnt(0)")
    g.e("s_barrier")
    g.e("s_lshl_b32 s27, s25, 12")
    g.e("s_lshl_b32 s29, s26, 11")
    g.e("s_add_u32 s27, s27, s29")
    g.e("v_add_u32 v8, s27, v7")
    g.e("v_add_u32 v9, 65536, v8")
    for p in range(8):
        base = "v8" if p < 4 else "v9"
        for nf in range(2):
            g.e(f"ds_read_b128 v[{96+8*p+4*nf}:{99+8*p+4*nf}], {base} offset:{16384*(p%4)+1024*nf}")
    g.e("s_waitcnt lgkmcnt(0)")
    for st in (4, 2, 1):
        for p in range(st):
            for i in range(0, 8, 2):
                g.e(f"v_pk_add_f32 {P(96+8*p+i)}, {P(96+8*p+i)}, {P(96+8*(p+st)+i)}")
    g.e("s_waitcnt vmcnt(0)")
    for nf in range(2):
        for h in range(2):
            r = 96+4*nf+2*h
            round_pair(g, r, 12)
            g.e(f"v_pk_mul_f32 {P(r)}, {P(r)}, {P(80+4*nf+2*h)}")
            round_pair(g, r, 12)
            g.e(f"v_lshlrev_b32 v14, 16, v{88+2*nf+h}")
            g.e(f"v_and_b32 v15, 0xffff0000, v{88+2*nf+h}")
            g.e(f"v_pk_add_f32 {P(r)}, {P(r)}, {P(14)}")
            g.e(f"v_cvt_pk_bf16_f32 v{112+2*nf+h}, v{r}, v{r+1}")
        g.e(f"buffer_store_dwordx2 v[{112+2*nf}:{113+2*nf}], v10, s[16:19], 0 offen offset:{32*nf}")

def main(out_path):
    g = G()
    name = NAME + "_kernel"
    g.raw(f".globl {name}")
    g.raw(".p2align 8")
    g.raw(f".type {name},@function")
    g.raw(f"{name}:")
    g.e("s_getpc_b64 s[86:87]")
    g.e("s_cmp_ge_u32 s2, 256")
    g.e("s_cbranch_scc1 k_done")
    g.e("s_load_dwordx2 s[4:5], s[0:1], 80")
    g.e("s_load_dwordx2 s[90:91], s[0:1], 72")
    g.e("s_load_dwordx4 s[8:11], s[0:1], 48")
    g.e("v_lshrrev_b32 v1, 6, v0")
    g.e("s_nop 0")
    g.e("v_readfirstlane_b32 s95, v1")
    g.e("s_waitcnt lgkmcnt(0)")
    task_mod_issue(g)
    srd(g, 96, 90, 0, 256)
    srd(g, 76, 4, WS_FLAG, 256*64)
    g.e("s_lshl_b32 s94, s2, 6")
    g.e("v_mov_b32 v255, s94")
    g.e("v_mov_b32 v254, 0")
    g.e("buffer_store_dword v254, v255, s[76:79], 0 offen sc1")
    srd(g, 64, 4, WS_FLAG2, 256*64)
    g.e("buffer_store_dword v254, v255, s[64:67], 0 offen sc1")
    g.e("s_cmp_lg_u32 s95, 0")
    g.e("s_cbranch_scc1 no_rank")
    rank_issue(g)
    g.lab("no_rank")
    if PROFILE:
        srd(g, 72, 4, WS_PROF, 256*1024)
    stamp(g)
    task_mod(g)
    g.e("s_cmp_ge_u32 s95, 4")
    g.e("s_cbranch_scc1 helper")
    arrive(g, 1, "a")
    l1_prefetch(g)
    stamp(g)
    g.e("s_cmp_lt_u32 s2, 48")
    g.e("s_cbranch_scc1 m_nowt")
    g.e("s_sub_u32 s70, s2, 48")
    task_wt(g, 70, "m")
    g.lab("m_nowt")
    stamp(g)
    phase_l1(g)
    stamp(g)
    arrive(g, 2, "b")
    stamp(g)
    phase_l2(g)
    stamp(g)
    arrive(g, 3, "c")
    stamp(g)
    phase_l3(g)
    stamp(g)
    arrive(g, 4, "d")
    g.e("s_branch join")
    g.lab("helper")
    g.e("v_subrev_u32 v0, 256, v0")
    if CODEPF:
        g.e(f"s_cmp_ge_u32 s2, {CODEPF}")
        g.e("s_cbranch_scc1 h_nopf")
        g.e("s_mov_b32 s8, s86")
        g.e("s_mov_b32 s9, s87")
        g.e(f"s_mov_b32 s10, k_done-{name}-4")
        g.e("s_mov_b32 s11, 0x00020000")
        g.e("v_lshlrev_b32 v1, 4, v0")
        g.e("s_mov_b32 s12, 0")
        for i in range(20):
            g.e(f"buffer_load_dwordx4 v[{16+4*i}:{19+4*i}], v1, s[8:11], s12 offen")
            g.e("s_add_u32 s12, s12, 4096")
        g.lab("h_nopf")
    if PRETOUCH:
        srd(g, 8, 4, 0, WS_END)
        g.e("v_lshlrev_b32 v1, 16, v0")
        g.e("buffer_load_dword v2, v1, s[8:11], 0 offen offset:128")
        g.e("s_mov_b32 s12, 0x1000000")
        g.e("buffer_load_dword v3, v1, s[8:11], s12 offen offset:128")
        g.e("s_waitcnt vmcnt(0)")
    g.e("s_cmp_lt_u32 s2, 48")
    g.e("s_cbranch_scc1 h_nowt")
    g.e("s_cmp_ge_u32 s2, 96")
    g.e("s_cbranch_scc1 h_nowt")
    g.e("s_add_u32 s70, s2, 160")
    task_wt(g, 70, "a")
    g.lab("h_nowt")
    task_wab(g)
    g.e("s_barrier")
    g.e("s_barrier")
    g.e("s_waitcnt vmcnt(0)")
    g.e("s_barrier")
    task_w1(g)
    g.e("s_barrier")
    g.e("s_barrier")
    g.e("s_cmp_lg_u32 s2, 0")
    g.e("s_cbranch_scc1 h_nocol0")
    g.e("s_barrier")
    g.lab("h_nocol0")
    g.e("s_barrier")
    g.e("s_waitcnt vmcnt(0)")
    g.e("s_barrier")
    task_w2(g)
    g.e("s_barrier")
    g.e("v_add_u32 v0, 256, v0")
    lid_read(g)
    g.e("s_barrier")
    g1_prefetch(g)
    g.e("s_barrier")
    g.e("s_waitcnt vmcnt(0)")
    g.e("s_barrier")
    g.lab("join")
    stamp(g)
    phase_g1(g)
    stamp(g)
    g2_prefetch(g)
    arrive(g, 5, "e")
    stamp(g)
    phase_g2(g)
    stamp(g)
    if PROFILE:
        g.e("v_writelane_b32 v248, s71, 28")
        g.e("v_writelane_b32 v248, s69, 29")
        g.e("v_writelane_b32 v248, s68, 30")
    if DBGOUT:
        g.e("s_cmp_lg_u32 s2, 100")
        g.e("s_cbranch_scc1 k_done")
        g.e("s_cmp_lg_u32 s95, 0")
        g.e("s_cbranch_scc1 k_done")
        g.e("v_readlane_b32 s88, v248, 0")
        sel = [3, 4, 6, 7, 9, 10, 12, 13, 15, 16]
        for n_, idx in enumerate(sel):
            g.e(f"v_readlane_b32 s89, v248, {idx}")
            g.e("s_sub_u32 s89, s89, s88")
            g.e(f"v_writelane_b32 v249, s89, {n_}")
        g.e("v_and_b32 v255, 63, v0")
        g.e("v_lshlrev_b32 v255, 2, v255")
        g.e("s_mov_b64 exec, 0x3ff")
        g.e("buffer_store_dword v249, v255, s[96:99], 0 offen offset:20")
    else:
        stamp_flush(g)
    g.lab("k_done")
    g.e("s_endpgm")
    hdr = open("cdna_kernels/" + NAME + ".s.ref").read().split("\n")
    head = []
    for l in hdr:
        if l.startswith("; Override"):
            break
        head.append(l)
    txt = "\n".join(head) + "\n"
    txt += f"; @launch grid=(256,1,1) block=(512,1,1) lds=151616\n"
    txt += '.amdgcn_target "amdgcn-amd-amdhsa--gfx950"\n.text\n'
    txt += "\n".join(g.L) + "\n"
    txt += '.section .rodata,"a"\n.p2align 6\n'
    txt += f""".amdhsa_kernel {name}
  .amdhsa_next_free_vgpr 256
  .amdhsa_next_free_sgpr 102
  .amdhsa_accum_offset 256
  .amdhsa_group_segment_fixed_size 0
  .amdhsa_kernarg_size 88
  .amdhsa_user_sgpr_count 2
  .amdhsa_user_sgpr_kernarg_segment_ptr 1
  .amdhsa_system_sgpr_workgroup_id_x 1
.end_amdhsa_kernel
"""
    open(out_path, "w").write(txt)

if __name__ == "__main__":
    if len(sys.argv) > 2 and sys.argv[2] == "prof":
        PROFILE = True
    if len(sys.argv) > 2 and sys.argv[2] == "dbg":
        PROFILE = True; DBGOUT = True
    main(sys.argv[1] if len(sys.argv) > 1 else "cdna_kernels/" + NAME + ".s")
```
